```python
import torch

def _softmax(x, axis=-1):
    return torch.softmax(x, dim=axis)
def _gelu(x):
    return torch.nn.functional.gelu(x, approximate="tanh")
def _silu(x):
    return torch.nn.functional.silu(x)
def _sigmoid(x):
    return torch.sigmoid(x)
def _layernorm(x, axis=-1, eps=1e-5):
    m = x.mean(dim=axis, keepdim=True)
    v = x.var(dim=axis, keepdim=True, unbiased=False)
    return (x - m) / torch.sqrt(v + eps)
def _scatter_add(tgt, idx, src, axis=0):
    return tgt.clone().index_add_(axis, idx, src)
def _segment_sum(src, seg, n):
    out = torch.zeros((n,) + src.shape[1:], dtype=src.dtype)
    return out.index_add_(0, seg, src)
def _pad(x, pw):
    flat = tuple(v for pair in reversed(pw) for v in pair)
    return torch.nn.functional.pad(x, flat)

kernel_name = 'concat_heads__ssm_conv_s4__spectral_gfnet__prompt'

def setup_inputs():

    _w = (lambda a: (lambda t: t.to(torch.bfloat16) if t.is_floating_point() else t)(torch.as_tensor(a)))
    def _A_setup():
        B, L, D, N = 1, 2048, 512, 128
        A_re = -(lambda _x: torch.exp(torch.as_tensor(_x)))((lambda *s: torch.randn(*s, dtype=torch.bfloat16) * 6.4)(D, N))
        A_im = torch.pi * (lambda *s: torch.randn(*s, dtype=torch.bfloat16) * 0.05)(D, N)
        B_re = (lambda *s: torch.randn(*s, dtype=torch.bfloat16) * 0.1)(D, N)
        B_im = (lambda *s: torch.randn(*s, dtype=torch.bfloat16) * 0.1)(D, N)
        C_re = (lambda *s: torch.randn(*s, dtype=torch.bfloat16) * 0.1)(D, N)
        C_im = (lambda *s: torch.randn(*s, dtype=torch.bfloat16) * 0.1)(D, N)
        log_dt = (lambda *s: torch.randn(*s, dtype=torch.bfloat16) * 0.05)(D) * 0.5 - 4.0
        Dskip = (lambda *s: torch.randn(*s, dtype=torch.bfloat16) * 0.05)(D)
        return {
            "u": _w((lambda *s: torch.randn(*s, dtype=torch.bfloat16) * 0.05)(B, L, D)),
            "A_re": _w(A_re),
            "A_im": _w(A_im),
            "B_re": _w(B_re),
            "B_im": _w(B_im),
            "C_re": _w(C_re),
            "C_im": _w(C_im),
            "log_dt": _w(log_dt),
            "Dskip": _w(Dskip),
        }
    _A_in = _A_setup()

    def _B_setup():
        B, S, D = 1, 2048, 512
        Df = D // 2 + 1
        return {
            "x": _w((lambda *s: torch.randn(*s, dtype=torch.bfloat16) * 0.05)(B, S, D)),
            "w_r": _w((lambda *s: torch.randn(*s, dtype=torch.bfloat16) * 1.6)(S, Df) * 0.02),
            "w_i": _w((lambda *s: torch.randn(*s, dtype=torch.bfloat16) * 1.6)(S, Df) * 0.02),
        }
    _B_in = _B_setup()

    return {
        "A_u": _A_in["u"],
        "A_A_re": _A_in["A_re"],
        "A_A_im": _A_in["A_im"],
        "A_B_re": _A_in["B_re"],
        "A_B_im": _A_in["B_im"],
        "A_C_re": _A_in["C_re"],
        "A_C_im": _A_in["C_im"],
        "A_log_dt": _A_in["log_dt"],
        "A_Dskip": _A_in["Dskip"],
        "B_x": _B_in["x"],
        "B_w_r": _B_in["w_r"],
        "B_w_i": _B_in["w_i"],
    }

def reference(A_u, A_A_re, A_A_im, A_B_re, A_B_im, A_C_re, A_C_im, A_log_dt, A_Dskip, B_x, B_w_r, B_w_i):
    def _A_ref(u, A_re, A_im, B_re, B_im, C_re, C_im, log_dt, Dskip):
        Bsz, L, D = u.shape
        dt = torch.exp(log_dt)[:, None]
        A = A_re + 1j * A_im
        Bc = B_re + 1j * B_im
        Cc = C_re + 1j * C_im
        logdA = dt * A
        dB = dt * Bc
        l = (lambda x, dt: x.to(dt))(torch.arange(L), A_re.dtype)
        P = torch.exp(logdA[:, :, None] * l[None, None, :])
        K = torch.einsum("dn,dnl,dn->dl", Cc, P, dB).real
        L2 = 2 * L
        Kp = _pad(K, ((0, 0), (0, L)))
        up = (lambda x, *d: x.permute(*d))(u, 0, 2, 1)
        up = _pad(up, ((0, 0), (0, 0), (0, L)))
        Kf = (lambda x, axes=(-2,-1): torch.fft.rfft2(x.float(), dim=axes))(Kp[:, None, :], axes=(-2, -1))
        Uf = (lambda x, axes=(-2,-1): torch.fft.rfft2(x.float(), dim=axes))(up[:, :, None, :], axes=(-2, -1))
        Yf = Uf * Kf[None, :, :, :]
        y = (lambda x, s, axes=(-2,-1): torch.fft.irfft2(x, s=s, dim=axes).to(torch.bfloat16))(Yf, (1, L2), axes=(-2, -1))[:, :, 0, :L]
        y = (lambda x, *d: x.permute(*d))(y, 0, 2, 1) + u * Dskip[None, None, :]
        return y

    def _B_ref(x, w_r, w_i):
        B, S, D = x.shape
        X = (lambda x, axes=(-2,-1): torch.fft.rfft2(x.float(), dim=axes))(x, axes=(-2, -1))
        W = w_r + 1j * w_i
        X = X * W
        y = (lambda x, s, axes=(-2,-1): torch.fft.irfft2(x, s=s, dim=axes).to(torch.bfloat16))(X, (S, D), axes=(-2, -1))
        return y

    a = _A_ref(A_u, A_A_re, A_A_im, A_B_re, A_B_im, A_C_re, A_C_im, A_log_dt, A_Dskip)
    b = _B_ref(B_x, B_w_r, B_w_i)
    return torch.concatenate([a, b], axis=-1)
```

```python
import re

TRANS = ("v_exp_f32", "v_log_f32", "v_rcp_f32", "v_rsq_f32", "v_sqrt_f32", "v_sin_f32", "v_cos_f32")
_REG = re.compile(r"^(-?)(?:abs\()?([vsa])(?:\[(\d+):(\d+)\]|(\d+))\)?$")

def regs_of(tok):
    tok = tok.strip()
    if tok in ("vcc", "exec", "m0", "scc"): return [tok]
    if tok in ("vcc_lo", "vcc_hi"): return ["vcc"]
    if tok in ("exec_lo", "exec_hi"): return ["exec"]
    m = _REG.match(tok)
    if not m: return []
    k = m.group(2)
    if m.group(3) is not None: return [f"{k}{i}" for i in range(int(m.group(3)), int(m.group(4)) + 1)]
    return [f"{k}{m.group(5)}"]

class I:
    __slots__ = ("text", "mn", "rd", "wr", "kind", "srcC", "cond", "label", "nops", "idx", "dpp")
    def __init__(self, text, cond=None):
        self.text = text.strip(); self.cond = cond; self.label = False; self.srcC = []; self.nops = 1; self.dpp = False
        t = self.text.split(";")[0].strip()
        if t.endswith(":") or t.startswith("."):
            self.mn = t; self.rd = []; self.wr = []; self.kind = "label" if t.endswith(":") else "dir"; return
        parts = t.split(None, 1); mn = parts[0]
        for suf in ("_e32", "_e64", "_dpp", "_sdwa"):
            if mn.endswith(suf): mn = mn[:-len(suf)]
        self.mn = mn
        rest = parts[1] if len(parts) > 1 else ""
        self.dpp = bool(re.search(r"quad_perm|row_|wave_", rest))
        rest2 = re.sub(r"\b(op_sel|op_sel_hi|neg_lo|neg_hi|quad_perm):\[[^\]]*\]", "", rest)
        ops = [o.strip() for o in rest2.split(",")] if rest2.strip() else []
        if ops: ops[-1] = ops[-1].split()[0] if ops[-1].split() else ops[-1]
        R = [regs_of(o) for o in ops]
        rd, wr = [], []
        flat = lambda L: [x for y in L for x in y]
        if mn.startswith("v_mfma"):
            self.kind = "mfma"; wr = R[0]; rd = flat(R[1:4]) + ["exec"]; self.srcC = R[3]
        elif mn.startswith("v_"):
            self.kind = "trans" if mn in TRANS else "valu"
            if mn.startswith("v_cmp"):
                wr = R[0]; rd = flat(R[1:])
            elif mn in ("v_permlane16_swap_b32", "v_permlane32_swap_b32", "v_swap_b32"):
                wr = R[0] + R[1]; rd = R[0] + R[1]
            elif mn == "v_nop": pass
            else:
                wr = R[0]; rd = flat(R[1:])
                if mn.startswith("v_fmac") or mn.startswith("v_pk_fmac") or self.dpp: rd += R[0]
                if mn == "v_cndmask_b32" and len(ops) == 3: rd += ["vcc"]
            if mn not in ("v_readfirstlane_b32",) or True: rd = rd + ["exec"]
        elif mn.startswith("ds_"):
            self.kind = "ds"
            if mn.startswith("ds_read") or mn.startswith("ds_bpermute"): wr = R[0]; rd = flat(R[1:])
            else: rd = flat(R)
            rd = rd + ["exec"]
        elif mn.startswith("global_load_lds") or (mn.startswith("buffer_load") and " lds" in t):
            self.kind = "vmem"; rd = flat(R) + ["m0", "exec"]
        elif mn.startswith("global_load") or mn.startswith("buffer_load"):
            self.kind = "vmem"; wr = R[0]; rd = flat(R[1:]) + ["exec"]
        elif mn.startswith("global_store") or mn.startswith("buffer_store") or mn.startswith("global_atomic"):
            self.kind = "vmem"; rd = flat(R) + ["exec"]
        elif mn.startswith("s_load") or mn in ("s_memtime", "s_memrealtime"):
            self.kind = "smem"; wr = R[0]; rd = flat(R[1:])
        elif mn == "s_waitcnt": self.kind = "wait"
        elif mn == "s_nop": self.kind = "nop"; self.nops = int(ops[0]) + 1
        elif mn in ("s_barrier", "s_endpgm", "s_setprio", "s_sleep"): self.kind = "ctl"
        elif mn.startswith("s_cbranch") or mn == "s_branch":
            self.kind = "branch"
            rd = {"s_cbranch_scc0": ["scc"], "s_cbranch_scc1": ["scc"], "s_cbranch_vccz": ["vcc"], "s_cbranch_vccnz": ["vcc"],
                  "s_cbranch_execz": ["exec"], "s_cbranch_execnz": ["exec"]}.get(mn, [])
        elif mn.startswith("s_cmp"):
            self.kind = "salu"; rd = flat(R); wr = ["scc"]
        elif mn.startswith("s_"):
            self.kind = "salu"; wr = R[0]; rd = flat(R[1:])
            if mn not in ("s_mov_b32", "s_mov_b64", "s_movk_i32", "s_mul_i32", "s_cselect_b32", "s_cselect_b64", "s_getreg_b32"): wr = wr + ["scc"]
            if mn in ("s_cselect_b32", "s_cselect_b64", "s_addc_u32"): rd += ["scc"]
            if "saveexec" in mn: wr += ["exec"]; rd += ["exec"]
        else:
            raise ValueError("unparsed: " + t)
        self.rd, self.wr = rd, wr
    def isvalu(self): return self.kind in ("valu", "trans")
    def wide_store(self):
        return self.kind == "vmem" and ("store_dwordx4" in self.mn or "store_dwordx3" in self.mn)

def need_ws(p, c):
    n = 0
    pw, cr, cw = set(p.wr), set(c.rd), set(c.wr)
    vw = {r for r in pw if r[0] in "va" and r != "vcc"}
    sw = {r for r in pw if r[0] == "s" and r != "scc" or r == "vcc"}
    if p.isvalu():
        if c.kind == "mfma" and vw & cr: n = max(n, 2)
        if p.kind == "trans" and c.kind in ("valu",) and vw & cr: n = max(n, 1)
        if p.kind == "trans" and c.kind in ("ds", "vmem", "mfma") and vw & cr: n = max(n, 1)
        if c.mn in ("v_readfirstlane_b32", "v_readlane_b32") and vw & cr: n = max(n, 1)
        if (c.mn.startswith("v_permlane") or c.dpp) and vw & cr: n = max(n, 2)
        if c.isvalu() and sw & cr: n = max(n, 2)
        if c.kind == "vmem" and sw & cr: n = max(n, 5)
        if c.kind in ("salu", "branch") and sw & cr: n = max(n, 1)
    if p.kind == "mfma":
        passes8 = "32x32" in p.mn
        big, ov, war = (12, 10, 7) if passes8 else (8, 6, 3)
        if c.kind == "mfma":
            ab = set(c.rd) - set(c.srcC)
            if vw & ab: n = max(n, big)
            if vw & set(c.srcC) and list(c.srcC) != list(p.wr): n = max(n, ov)
            if vw & cw and not (vw & set(c.srcC)): n = max(n, big)
        elif c.isvalu() or c.kind in ("ds", "vmem"):
            if vw & (cr | cw): n = max(n, big)
        if c.isvalu() and set(p.srcC) & cw: n = max(n, war)
    if p.wide_store() and (set(p.rd) & cw):
        n = max(n, 2 if c.isvalu() else 1)
    if p.kind == "salu" and "m0" in pw and c.kind == "vmem" and "m0" in cr: n = max(n, 1)
    return n

LAT = {"ds": 96, "vmem": 2000}
def issue_cost(i):
    if i.kind == "trans": return 8
    if i.kind == "mfma": return 8
    return 4

def schedule(ins, mfma_cyc=16):
    n = len(ins)
    succ = [[] for _ in range(n)]; npred = [0] * n
    lastw, readers = {}, {}
    lastk = {}
    def edge(a, b, lat):
        succ[a].append((b, lat)); npred[b] += 1
    for j, c in enumerate(ins):
        deps = {}
        for r in c.rd:
            if r in lastw:
                a = lastw[r]; p = ins[a]
                lat = 4 * (need_ws(p, c) + 1)
                if p.kind in LAT and r in p.wr: lat = LAT[p.kind]
                if p.kind == "mfma" and c.kind == "mfma" and list(c.srcC) == list(p.wr): lat = mfma_cyc
                deps[a] = max(deps.get(a, 0), lat)
        for r in c.wr:
            if r in lastw:
                a = lastw[r]; deps[a] = max(deps.get(a, 0), 4 * (need_ws(ins[a], c) + 1), LAT.get(ins[a].kind, 0))
            for a in readers.get(r, []):
                if a != j: deps[a] = max(deps.get(a, 0), 4 * (need_ws(ins[a], c) + 1))
        if c.kind in ("ds", "vmem"):
            if c.kind in lastk: deps[lastk[c.kind]] = max(deps.get(lastk[c.kind], 0), 4)
            lastk[c.kind] = j
        for a, lat in deps.items(): edge(a, j, lat)
        for r in c.wr: lastw[r] = j; readers[r] = []
        for r in c.rd: readers.setdefault(r, []).append(j)
    prio = [0] * n
    for a in range(n - 1, -1, -1):
        own = mfma_cyc if ins[a].kind == "mfma" else issue_cost(ins[a])
        prio[a] = max([own] + [lat + prio[b] for b, lat in succ[a]])
    ready_at = [0] * n; done = 0; t = 0; mfma_free = 0; out = []
    avail = [j for j in range(n) if npred[j] == 0]
    while done < n:
        def start(j):
            s = max(t, ready_at[j])
            if ins[j].kind == "mfma": s = max(s, mfma_free)
            return s
        now = [j for j in avail if start(j) <= t]
        if now: j = max(now, key=lambda j: (prio[j], -j))
        else: j = min(avail, key=lambda j: (start(j), -prio[j], j))
        s = start(j); avail.remove(j); out.append(ins[j]); done += 1
        if ins[j].kind == "mfma": mfma_free = s + mfma_cyc
        t = s + issue_cost(ins[j])
        for b, lat in succ[j]:
            ready_at[b] = max(ready_at[b], s + lat); npred[b] -= 1
            if npred[b] == 0: avail.append(b)
    return out, t

def excl(a, b):
    return a is not None and b is not None and a != b and ":" in a and a.split(":")[0] == b.split(":")[0]

class Prog:
    def __init__(self): self.ins = []; self.cond = None; self.est = []
    def __call__(self, text):
        for line in text.strip().split("\n"):
            line = line.strip()
            if line and not line.startswith(";"): self.ins.append(I(line, self.cond))
    def sched(self, lines, name=""):
        L = []
        for x in lines:
            for line in x.strip().split("\n"):
                line = line.strip()
                if line and not line.startswith(";"): L.append(I(line, self.cond))
        out, t = schedule(L)
        self.est.append((name, len(L), t)); self.ins += out
    def reset_state(self): self.ins.append("RESET")
    def finalize(self):
        out = []; vm = []; lg = []; hist = []; done = set()
        def parse_wait(text):
            v = re.search(r"vmcnt\((\d+)\)", text); l = re.search(r"lgkmcnt\((\d+)\)", text)
            return (int(v.group(1)) if v else None, int(l.group(1)) if l else None)
        def apply_wait(q, nkeep, cond):
            kept = []; cnt = 0
            for e in reversed(q):
                sure = e.cond is None or e.cond == cond
                retired = nkeep == 0 or (cnt >= nkeep and sure)
                if sure: cnt += 1
                if retired:
                    if cond is None or e.cond == cond: continue
                    done.add((id(e), cond))
                kept.append(e)
            return list(reversed(kept))
        def younger(q, k, cond):
            return sum(1 for e in q[k + 1:] if e.cond is None or e.cond == cond)
        def emit(i):
            out.append(i); hist.append(i)
        for c in self.ins:
            if c == "RESET": vm = []; lg = []; hist.clear(); continue
            if c.kind == "wait":
                v, l = parse_wait(c.text)
                if v is not None: vm = apply_wait(vm, v, c.cond)
                if l is not None: lg = apply_wait(lg, l, c.cond)
                emit(c); continue
            if c.kind in ("label", "dir"): out.append(c); continue
            touch = set(c.rd) | set(c.wr)
            wv = wl = None
            for k, e in enumerate(vm):
                if set(e.wr) & touch and not excl(e.cond, c.cond) and (id(e), c.cond) not in done:
                    nn = younger(vm, k, c.cond); wv = nn if wv is None else min(wv, nn)
            for k, e in enumerate(lg):
                if set(e.wr) & touch and not excl(e.cond, c.cond) and (id(e), c.cond) not in done:
                    nn = 0 if any(x.kind == "smem" for x in lg) else younger(lg, k, c.cond)
                    wl = nn if wl is None else min(wl, nn)
            if wv is not None or wl is not None:
                if wv is not None: wv = min(wv, 63)
                if wl is not None: wl = min(wl, 15)
                txt = "s_waitcnt " + " ".join(([f"vmcnt({wv})"] if wv is not None else []) + ([f"lgkmcnt({wl})"] if wl is not None else []))
                w = I(txt, c.cond)
                if wv is not None: vm = apply_wait(vm, wv, c.cond)
                if wl is not None: lg = apply_wait(lg, wl, c.cond)
                emit(w)
            dist = 0; need = 0
            for p in reversed(hist):
                if excl(p.cond, c.cond): continue
                need = max(need, need_ws(p, c) - dist)
                if p.cond is None or p.cond == c.cond: dist += p.nops
                if dist >= 20: break
            while need > 0:
                k = min(need, 16); emit(I(f"s_nop {k-1}", c.cond)); need -= k
            emit(c)
            if c.kind == "vmem": vm.append(c)
            elif c.kind in ("ds", "smem"): lg.append(c)
        return out
    def text(self):
        return "\n".join(("" if i.kind == "label" else "    ") + i.text for i in self.finalize()) + "\n"

class Regs:
    def __init__(self, start, limit): self.p = start; self.limit = limit; self.hi = start
    def get(self, n=1, align=None):
        align = align or (1 if n == 1 else 2)
        self.p = (self.p + align - 1) // align * align
        r = self.p; self.p += n; self.hi = max(self.hi, self.p)
        assert self.p <= self.limit, "out of registers"
        return r
    def mark(self): return self.p
    def release(self, m): self.p = m

def vr(b, n): return f"v[{b}:{b+n-1}]" if n > 1 else f"v{b}"
```

```python
import sys, struct, math
from asmlib import Prog, Regs, vr

NAME = "concat_heads__ssm_conv_s4__spectral_gfnet__prompt"
def fl(x): return "0x%08x" % struct.unpack("<I", struct.pack("<f", x))[0]

TS, VS, US, YS = 10368, 10240, 10240, 10240
T1_OFF = 0
V_OFF = T1_OFF + 256 * TS
UT_OFF = V_OFF + 256 * VS
YT_OFF = UT_OFF + 256 * US
VN_OFF = YT_OFF + 256 * YS
EP_OFF = VN_OFF + 16384
ST_OFF = EP_OFF + 4096
CNT = 0
XT = 128
WL = XT + 8 * 1088
TI = WL + 8192
VO = TI + 2 * 4160
VI = VO + 8 * 1040
NL = VI + 8192
UTL = NL + 1024
FAC = UTL + 8192
FACW = 53 * 272
KC = FAC + 4 * FACW
KR = KC + 2 * 1600
UU = KR + 2 * 4 * 4160
LDS_END = UU + 2 * 4576
RED = FAC
YTL = FAC + 16384
LDS_BYTES = (LDS_END + 255) // 256 * 256
MAXPOLL = 1 << 14
SGN = "s49"
ROWS = list(range(8)) + [256, 258, 260, 262, 512, 516, 768, 772, 1024, 1280, 1536, 1792, 2048]

class Gen:
    def __init__(self, stamps=False, diag=False, strict=False, nonce=False):
        self.strict = strict; self.nonce = nonce
        self.P = Prog(); self.stamps = stamps; self.nst = 0; self.lab = 0; self.diag = diag; self.ndiag = 0
    def note_polls(self):
        if not self.diag: return
        k = self.ndiag; self.ndiag += 1
        self.P(f"""s_load_dwordx2 s[60:61], s[0:1], 104
        s_sub_u32 s62, {MAXPOLL}, s48
        v_mov_b32 v4, s62
        s_waitcnt lgkmcnt(0)
        s_mov_b64 exec, 1
        global_atomic_umax v5, v4, s[60:61] offset:{4*k}
        s_mov_b64 exec, -1""")
    def L(self, base):
        self.lab += 1; return f"L_{base}_{self.lab}"
    def stamp(self):
        if self.stamps:
            self.P(f"s_memrealtime s[{64+2*self.nst}:{65+2*self.nst}]"); self.nst += 1
    def dump_stamps(self, v):
        if not self.stamps: return
        P = self.P
        P(f"""s_waitcnt lgkmcnt(0)
        s_lshl_b32 s7, s2, 3
        s_add_u32 s7, s7, s3
        s_lshl_b32 s7, s7, 6
        s_add_u32 s7, s7, {ST_OFF}
        v_mov_b32 v{v}, s7""")
        for i in range(self.nst):
            P(f"v_mov_b32 v{v+1}, s{64+2*i}\nglobal_store_dword v{v}, v{v+1}, s[42:43] offset:{4*i}\ns_nop 1")
    def gbar(self, off, target, vz, vone, vt):
        l = self.L("gb"); d = self.L("gbd")
        self.P(f"""s_mov_b64 exec, 1
        ds_add_u32 v{vz}, v{vone} offset:{off}
        s_mov_b64 exec, -1
        s_mov_b32 s48, {1 << 20}
        {l}:
        ds_read_b32 v{vt}, v{vz} offset:{off}
        s_sub_u32 s48, s48, 1
        s_cbranch_scc1 {d}
        s_waitcnt lgkmcnt(0)
        v_readfirstlane_b32 s7, v{vt}
        s_cmp_lt_u32 s7, {target}
        s_cbranch_scc1 {l}
        {d}:
        s_waitcnt lgkmcnt(0)""")
    def validate(self, loads, checks):
        l = self.L("chk"); d = self.L("ok")
        self.P(f"""s_mov_b32 s48, {MAXPOLL}
        {l}:
        s_waitcnt vmcnt(0)""")
        self.P(checks)
        self.P(f"""s_and_b64 exec, s[10:11], s[10:11]
        s_cbranch_scc0 {d}
        s_sub_u32 s48, s48, 1
        s_cbranch_scc1 {d}""")
        self.P(loads)
        self.P(f"""s_branch {l}
        {d}:
        s_mov_b64 exec, -1
        s_waitcnt vmcnt(0)""")
        self.note_polls()
    @staticmethod
    def csum(d, t):
        return [f"v_lshl_add_u32 v{t}, v{d+2}, 5, v{d+3}", f"v_lshl_add_u32 v{t}, v{d+1}, 9, v{t}", f"v_xad_u32 v{t}, v{d}, s5, v{t}"]
    def chk16(self, d0, d1, c0, c1, t0, t1):
        a, b = self.csum(d0, t0), self.csum(d1, t1)
        return "\n".join(x for p in zip(a, b) for x in p) + f"""
        v_cmp_ne_u32 vcc, v{t0}, v{c0}
        v_cmp_ne_u32 s[10:11], v{t1}, v{c1}
        s_or_b64 s[10:11], s[10:11], vcc"""
    @staticmethod
    def cvt(d, a, b, na=False, nb=False):
        return f"v_cvt_pk_bf16_f32 v{d}, {'-' if na else ''}v{a}, {'-' if nb else ''}v{b}"
    @staticmethod
    def cmul(dr, di, c, s, outr, outi, t1, t2, conj):
        if conj:
            return [f"v_mul_f32 v{t1}, v{di}, v{s}", f"v_mul_f32 v{t2}, v{di}, v{c}",
                    f"v_fma_f32 v{outr}, v{dr}, v{c}, v{t1}", f"v_fma_f32 v{outi}, -v{dr}, v{s}, v{t2}"]
        return [f"v_mul_f32 v{t1}, v{di}, v{s}", f"v_mul_f32 v{t2}, v{di}, v{c}",
                f"v_fma_f32 v{outr}, v{dr}, v{c}, -v{t1}", f"v_fma_f32 v{outi}, v{dr}, v{s}, v{t2}"]
    @staticmethod
    def mf(d, a, b, c=None):
        return f"v_mfma_f32_16x16x32_bf16 {vr(d,4)}, {vr(a,4)}, {vr(b,4)}, {vr(c,4) if c is not None else '0'}"
    @staticmethod
    def pairs(ang0, step, n, cos, sin, tmp):
        o = []
        for i in range(n):
            a = ang0 if i == 0 else tmp + i
            if i: o.append(f"v_add_f32 v{a}, v{ang0 if i == 1 else tmp + i - 1}, v{step}")
            o += [f"v_cos_f32 v{cos+i}, v{a}", f"v_sin_f32 v{sin+i}, v{a}"]
        return o

    def prologue(self):
        P = self.P
        self.stamp()
        P(f"""s_cmp_ge_u32 s2, 256
        s_cbranch_scc1 L_end
        s_load_dwordx2 s[42:43], s[0:1], 112
        s_load_dwordx16 s[16:31], s[0:1], 0
        s_load_dwordx8 s[32:39], s[0:1], 64
        s_load_dwordx2 s[40:41], s[0:1], 96
        s_load_dwordx2 s[14:15], s[0:1], 104
        v_lshrrev_b32 v4, 6, v0
        v_and_b32 v1, 63, v0
        v_readfirstlane_b32 s3, v4
        v_and_b32 v2, 15, v0
        v_bfe_u32 v3, v0, 4, 2
        s_mov_b32 {SGN}, 0x80008000
        v_mov_b32 v5, 0
        v_mov_b32 v6, 1
        s_and_b32 s8, s2, 7
        s_lshr_b32 s9, s2, 3
        s_cmp_ge_u32 s3, 4
        s_cbranch_scc1 L_A""")

    def epoch(self):
        if self.nonce: return
        self.P(f"""s_add_u32 s14, s42, {EP_OFF}
        s_addc_u32 s15, s43, 0
        s_load_dword s6, s[14:15], 0""")
    def publish_nonce(self, v):
        if not self.nonce: return
        l = self.L("pub")
        self.P(f"""s_or_b32 s7, s2, s3
        s_cmp_eq_u32 s7, 0
        s_cbranch_scc0 {l}""")
        self.P.cond = "pub"
        self.P(f"""s_memrealtime s[58:59]
        s_waitcnt lgkmcnt(0)
        s_mul_i32 s59, s59, 0x9e3779b1
        s_add_u32 s58, s58, s59
        s_mul_i32 s58, s58, 0x85ebca6b
        s_or_b32 s58, s58, 1
        v_mov_b32 v{v}, s58
        s_mov_b64 exec, 1
        global_store_dword v5, v{v}, s[14:15] sc1
        s_mov_b64 exec, -1""")
        self.P.cond = None
        self.P(f"{l}:")
    def fetch_nonce(self, v):
        if not self.nonce: return
        l, lp, d = self.L("get"), self.L("getp"), self.L("getd")
        self.P(f"""s_cmp_eq_u32 s3, 1
        s_cbranch_scc0 {l}""")
        self.P.cond = "get"
        self.P(f"""s_mov_b32 s48, {MAXPOLL}
        {lp}:
        global_load_dword v{v}, v5, s[14:15] sc1
        s_sub_u32 s48, s48, 1
        s_cbranch_scc1 {d}
        s_waitcnt vmcnt(0)
        v_readfirstlane_b32 s7, v{v}
        s_cmp_eq_u32 s7, 0
        s_cbranch_scc1 {lp}
        {d}:
        s_waitcnt vmcnt(0)
        ds_write_b32 v5, v{v} offset:{CNT + 64}""")
        self.P.cond = None
        self.P(f"{l}:")
    def tag(self, v):
        if self.nonce:
            self.P(f"""s_waitcnt lgkmcnt(0)
            s_barrier
            ds_read_b32 v{v}, v5 offset:{CNT + 64}
            s_waitcnt lgkmcnt(0)
            v_readfirstlane_b32 s5, v{v}""")
            return
        self.P("""s_waitcnt lgkmcnt(0)
        s_mul_i32 s5, s6, 0x9e3779b1
        s_add_u32 s5, s5, 0x7f4a7c15
        s_barrier""")

    def role_B(self):
        P = self.P; R = Regs(7, 256); cvt = self.cvt; mf = self.mf
        VZ, VONE = 5, 6
        vt = R.get(); tau = R.get()
        P("s_mov_b32 s4, s3")
        a0 = R.get()
        P(f"""s_lshl_b32 s7, s2, 10
        s_lshl_b32 s12, s4, 19
        s_add_u32 s7, s7, s12
        v_lshl_add_u32 v{a0}, v1, 4, s7
        s_mul_i32 s12, s4, 2176
        s_add_u32 s12, s12, {XT}
        s_mov_b32 m0, s12
        s_waitcnt lgkmcnt(0)
        global_load_lds_dwordx4 v{a0}, s[34:35]
        s_add_u32 s12, s12, 1088
        v_add_u32 v{a0}, 0x40000, v{a0}
        s_mov_b32 m0, s12
        s_nop 0
        global_load_lds_dwordx4 v{a0}, s[34:35]""")
        self.epoch()
        self.publish_nonce(vt)
        self.stamp()
        P(f"""v_lshlrev_b32 v{vt}, 2, v2
        ds_write_b32 v{vt}, v{VZ} offset:{CNT}
        s_lshl_b32 s7, s4, 6
        v_add_u32 v{tau}, s7, v1""")
        S1C = [R.get(4), R.get(4)]; S1S = [R.get(4), R.get(4)]
        TWc = R.get(4); TWs = R.get(4)
        C2 = [[R.get(4) for _ in range(2)] for _ in range(2)]
        S2 = [[R.get(4) for _ in range(2)] for _ in range(2)]
        N2 = [[R.get(4) for _ in range(2)] for _ in range(2)]
        b1_lo, b1_hi = S1C[0], R.mark()
        M1re, M1im, M2re, M2im, M2cre, M2cim, M1cre, M1cim = [R.get(4) for _ in range(8)]
        TFc, TFs, TIc, TIs = [R.get(4) for _ in range(4)]
        b2_lo, b2_hi = M1re, R.mark()
        Wraw = R.get(8, 4); NT = Wraw
        aXT, aT1, aT1c = R.get(), R.get(), R.get()
        NW = R.get(8, 2)
        Q = Regs(b1_lo, b1_hi)
        Pre = [Q.get(4), Q.get(4)]; Pim = [Q.get(4), Q.get(4)]
        COS = [[Q.get(4), Q.get(4)], [Q.get(4), Q.get(4)]]; SIN = [[Q.get(4), Q.get(4)], [Q.get(4), Q.get(4)]]
        NQ = Q.get(4)
        aG, aGc, aGl = Q.get(), Q.get(), Q.get()
        aTI = [Q.get() for _ in range(4)]; aVO = Q.get(); aVOr = Q.get(); aVst = Q.get(); aVc = Q.get()
        aH, aHc, aHl = Q.get(), Q.get(), Q.get()
        aVI = [Q.get() for _ in range(4)]; aO1, aO2 = Q.get(), Q.get()
        aWl, aWr, aNT = aXT, aT1, aT1c
        m0 = R.mark()
        t = R.get(40, 2); c_ = R.get(8); s_ = R.get(8); tm = R.get(8)
        fa, ph, ang, gf, fcb, mk, mj, mkj, k1f, fbf, jf = [t + i for i in range(11)]
        blk = [f"""s_lshl_b32 s7, s4, 4
        v_add_u32 v{fa}, s7, v2
        v_cvt_f32_u32 v{ph}, v{fa}
        v_mul_f32 v{ph}, {fl(1/64)}, v{ph}
        v_cvt_f32_u32 v{gf}, v3
        v_mul_f32 v{ang}, {fl(8.0)}, v{gf}
        v_mul_f32 v{ang}, v{ang}, v{ph}"""]
        blk += self.pairs(ang, ph, 8, c_, s_, tm)
        blk += [f"v_and_b32 v{mk}, 1, v{fa}", f"v_mul_lo_u32 v{mk}, v{mk}, {SGN}"]
        for d in range(4):
            blk += [cvt(S1C[0] + d, c_ + 2*d, c_ + 2*d + 1), cvt(S1S[0] + d, s_ + 2*d, s_ + 2*d + 1, True, True),
                    f"v_xor_b32 v{S1C[1]+d}, v{S1C[0]+d}, v{mk}", f"v_xor_b32 v{S1S[1]+d}, v{S1S[0]+d}, v{mk}"]
        P.sched(blk, "B1c1")
        blk = [f"""v_and_b32 v{fcb}, 1, v3
        v_lshlrev_b32 v{fcb}, 2, v{fcb}
        v_cvt_f32_u32 v{fcb}, v{fcb}
        v_mul_f32 v{t+12}, {fl(1/8)}, v{ph}
        v_mul_f32 v{t+13}, v{fcb}, v{t+12}"""]
        blk += self.pairs(t + 13, t + 12, 4, TWc, TWs, tm)
        blk += [f"""v_lshrrev_b32 v{t+14}, 2, v2
        v_cvt_f32_u32 v{k1f}, v{t+14}
        v_and_b32 v{mk}, 1, v{t+14}
        v_mul_lo_u32 v{mk}, v{mk}, {SGN}
        v_and_b32 v{t+15}, 3, v2
        v_cvt_f32_u32 v{fbf}, v{t+15}
        v_mul_f32 v{fbf}, {fl(1/8)}, v{fbf}
        v_lshrrev_b32 v{t+16}, 1, v3
        v_cvt_f32_u32 v{jf}, v{t+16}
        v_mul_lo_u32 v{mj}, v{t+16}, {SGN}
        v_xor_b32 v{mkj}, v{mk}, v{mj}
        v_mul_f32 v{t+17}, v{jf}, v{k1f}
        v_mul_f32 v{t+17}, {fl(1/8)}, v{t+17}
        v_fma_f32 v{t+17}, v{fcb}, v{fbf}, v{t+17}
        v_mul_f32 v{t+18}, {fl(0.25)}, v{k1f}
        v_add_f32 v{t+18}, v{t+18}, v{t+17}"""]
        blk += self.pairs(t + 17, fbf, 4, c_, s_, t + 20)
        blk += self.pairs(t + 18, fbf, 4, c_ + 4, s_ + 4, t + 24)
        msk = {(0, 1): mj, (1, 0): mk, (1, 1): mkj}
        for d in range(4):
            blk += [cvt(C2[0][0] + d, c_ + 2*d, c_ + 2*d + 1), cvt(S2[0][0] + d, s_ + 2*d, s_ + 2*d + 1),
                    cvt(N2[0][0] + d, s_ + 2*d, s_ + 2*d + 1, True, True)]
            for (kk, ot), m in msk.items():
                for X in (C2, S2, N2): blk.append(f"v_xor_b32 v{X[kk][ot]+d}, v{X[0][0]+d}, v{m}")
        blk += [f"""v_lshrrev_b32 v{t+28}, 2, v2
        v_lshl_add_u32 v{t+28}, v3, 3, v{t+28}
        v_lshlrev_b32 v{t+28}, 4, v{t+28}
        v_bfe_u32 v{t+29}, v2, 1, 1
        v_mul_u32_u24 v{t+29}, 1088, v{t+29}
        v_and_b32 v{t+30}, 1, v2
        v_lshlrev_b32 v{t+30}, 3, v{t+30}
        v_add3_u32 v{aXT}, v{t+28}, v{t+29}, v{t+30}
        v_add_u32 v{aXT}, {XT}, v{aXT}
        s_mul_i32 s12, s2, {TS}
        s_lshl_b32 s13, s4, 8
        s_add_u32 s13, s13, s12
        s_add_u32 s13, s13, {T1_OFF + 2048}
        v_lshlrev_b32 v{t+31}, 10, v{t+14}
        v_lshl_add_u32 v{t+31}, v{t+15}, 6, v{t+31}
        v_lshl_add_u32 v{t+31}, v3, 4, v{t+31}
        v_add_u32 v{aT1}, s13, v{t+31}
        s_lshl_b32 s13, s4, 9
        s_add_u32 s13, s13, s12
        s_add_u32 s13, s13, {T1_OFF + 8192}
        v_lshlrev_b32 v{t+32}, 4, v2
        v_lshl_add_u32 v{t+32}, v3, 2, v{t+32}
        v_add_u32 v{aT1c}, s13, v{t+32}"""]
        P.sched(blk, "B1c2")
        P(f"""s_mul_i32 s7, s8, 514
        s_lshl_b32 s12, s9, 4
        s_add_u32 s7, s7, s12
        v_mul_u32_u24 v{t}, 4112, v{tau}
        v_add_u32 v{t}, s7, v{t}
        global_load_dwordx4 {vr(Wraw,4)}, v{t}, s[36:37]
        global_load_dwordx4 {vr(Wraw+4,4)}, v{t}, s[38:39]""")
        lsk = self.L("nw")
        P(f"""s_cmp_eq_u32 s9, 31
        s_cselect_b32 s46, s4, 0
        s_cmp_eq_u32 s46, 3
        s_cbranch_scc0 {lsk}""")
        P.cond = "nyq"
        P(f"""s_mul_i32 s7, s8, 514
        s_add_u32 s7, s7, 512
        v_lshl_add_u32 v{t}, v3, 6, v2
        v_mul_u32_u24 v{t}, 4112, v{t}
        v_add_u32 v{t}, s7, v{t}""")
        for r in range(4):
            P(f"""global_load_ushort v{NW+r}, v{t}, s[36:37]
            global_load_ushort v{NW+4+r}, v{t}, s[38:39]
            v_add_u32 v{t}, {16*4112}, v{t}""")
        P.cond = None
        P(f"{lsk}:")
        kf, g4, st, an, nf = [t + i for i in range(5)]
        blk = [f"""v_lshl_add_u32 v{kf}, v2, 3, s8
        v_cvt_f32_u32 v{kf}, v{kf}
        v_lshlrev_b32 v{g4}, 2, v3
        v_cvt_f32_u32 v{g4}, v{g4}
        v_cvt_f32_u32 v{nf}, v2
        v_mul_f32 v{st}, {fl(1/128)}, v{kf}
        v_mul_f32 v{an}, v{g4}, v{st}
        v_mul_f32 v{t+5}, {fl(1/2048)}, v{kf}
        v_mul_f32 v{t+6}, v{g4}, v{t+5}
        v_mul_f32 v{t+7}, {fl(1/16)}, v{nf}
        v_mul_f32 v{t+8}, v{g4}, v{t+7}
        v_lshl_add_u32 v{t+9}, v3, 5, s8
        v_cvt_f32_u32 v{t+9}, v{t+9}
        v_mul_f32 v{t+9}, v{t+9}, v{nf}
        v_mul_f32 v{t+10}, {fl(1/2048)}, v{t+9}
        v_mul_f32 v{t+11}, {fl(1/256)}, v{nf}
        v_mul_f32 v{t+12}, {fl(1/128)}, v{t+9}"""]
        blk += self.pairs(an, st, 4, c_, s_, t + 16)
        for m in range(4): blk += [cvt(M1re + m, c_ + m, s_ + m), cvt(M1im + m, s_ + m, c_ + m, True)]
        blk += self.pairs(t + 6, t + 5, 4, TFc, TFs, t + 20)
        blk += self.pairs(t + 8, t + 7, 4, c_ + 4, s_ + 4, t + 24)
        for m in range(4):
            c, s = c_ + 4 + m, s_ + 4 + m
            blk += [cvt(M2re + m, c, s), cvt(M2im + m, s, c, True), cvt(M2cre + m, c, s, False, True), cvt(M2cim + m, s, c)]
        blk += self.pairs(t + 10, t + 11, 4, TIc, TIs, t + 28)
        for m in range(4): blk += [f"v_mul_f32 v{TIc+m}, {fl(2.0**-19)}, v{TIc+m}", f"v_mul_f32 v{TIs+m}, {fl(2.0**-19)}, v{TIs+m}"]
        blk += self.pairs(t + 12, t + 7, 4, tm, tm + 4, t + 32)
        for m in range(4): blk += [cvt(M1cre + m, tm + m, tm + 4 + m, False, True), cvt(M1cim + m, tm + 4 + m, tm + m)]
        P.sched(blk, "B2c")
        self.fetch_nonce(vt)
        P("s_waitcnt vmcnt(0)" if self.strict else "s_waitcnt vmcnt(2)")
        self.tag(vt)
        self.stamp()
        R.release(m0)
        XA = [[R.get(4) for _ in range(2)] for _ in range(4)]
        Dre = [R.get(4) for _ in range(4)]; Dim = [R.get(4) for _ in range(4)]
        DR = [R.get(4), R.get(4)]; DI = [R.get(4), R.get(4)]
        tp = R.get(16)
        Ore = [XA[0][0], XA[0][1]]; Oim = [XA[1][0], XA[1][1]]; OG = [XA[2][0], XA[2][1]]; cs = XA[3][0]
        blk = []
        for tt in range(4):
            for ks in range(2):
                for hh in range(2):
                    blk.append(f"ds_read_b64_tr_b16 {vr(XA[tt][ks]+2*hh,2)}, v{aXT} offset:{tt*2176+ks*512+hh*64}")
        for tt in range(4):
            blk += [mf(Dre[tt], XA[tt][0], S1C[0]), mf(Dim[tt], XA[tt][0], S1S[0]),
                    mf(Dre[tt], XA[tt][1], S1C[1], Dre[tt]), mf(Dim[tt], XA[tt][1], S1S[1], Dim[tt])]
        for tt in range(4):
            for r in range(4):
                q = tp + 4 * (r % 4)
                blk += self.cmul(Dre[tt] + r, Dim[tt] + r, TWc + r, TWs + r, q + 2, q + 3, q, q + 1, True)
                if r % 2 == 1:
                    d = 2 * (tt % 2) + r // 2
                    blk += [cvt(DR[tt // 2] + d, q - 2, q + 2), cvt(DI[tt // 2] + d, q - 1, q + 3)]
        for kk in range(2):
            for ot in range(2):
                blk += [mf(Ore[ot], DR[kk], C2[kk][ot], Ore[ot] if kk else None), mf(Oim[ot], DI[kk], C2[kk][ot], Oim[ot] if kk else None),
                        mf(Ore[ot], DI[kk], S2[kk][ot], Ore[ot]), mf(Oim[ot], DR[kk], N2[kk][ot], Oim[ot])]
        for ot in range(2):
            blk += [cvt(OG[ot], Ore[ot], Ore[ot] + 1), cvt(OG[ot] + 1, Ore[ot] + 2, Ore[ot] + 3),
                    cvt(OG[ot] + 2, Oim[ot], Oim[ot] + 1), cvt(OG[ot] + 3, Oim[ot] + 2, Oim[ot] + 3)]
            blk += [f"global_store_dwordx4 v{aT1}, {vr(OG[ot],4)}, s[42:43] offset:{4096*ot-2048} sc1"]
        for ot in range(2):
            blk += self.csum(OG[ot], cs + ot) + [f"global_store_dword v{aT1c}, v{cs+ot}, s[42:43] offset:{256*ot} sc1"]
        P.sched(blk, "B1")
        self.stamp()
        lsk = self.L("n1")
        P(f"s_cmp_eq_u32 s4, 0\ns_cbranch_scc0 {lsk}")
        P.cond = "w0"
        blk = []
        for kk in range(2):
            for d in range(4): blk.append(f"v_xor_b32 v{DI[kk]+d}, 0x80000000, v{DR[kk]+d}")
        for ot in range(2):
            blk += [mf(Dre[ot], DI[0], C2[0][ot]), mf(Dim[ot], DI[0], N2[0][ot]),
                    mf(Dre[ot], DI[1], C2[1][ot], Dre[ot]), mf(Dim[ot], DI[1], N2[1][ot], Dim[ot])]
            blk += [cvt(tp + 2 * ot, Dre[ot], Dim[ot]), f"v_add_u32 v{tp+2*ot+1}, s5, v{tp+2*ot}"]
        blk += [f"""s_mul_i32 s7, s2, {TS}
        s_add_u32 s7, s7, {T1_OFF + 10240}
        v_lshlrev_b32 v{tp+4}, 1, v2
        v_add_u32 v{tp+4}, s7, v{tp+4}"""]
        P.sched(blk, "B1n")
        P(f"""s_mov_b64 exec, 0x1111
        global_store_dwordx2 v{tp+4}, {vr(tp,2)}, s[42:43] sc1
        global_store_dwordx2 v{tp+4}, {vr(tp+2,2)}, s[42:43] offset:32 sc1
        s_mov_b64 exec, -1""")
        P.cond = None
        P(f"{lsk}:")
        R.release(m0)
        Wr = [R.get(4), R.get(4)]; Wi = [R.get(4), R.get(4)]
        m0 = R.mark()
        t = R.get(40, 2); c_ = R.get(8); s_ = R.get(8); tm = R.get(16)
        blk = [f"""v_lshlrev_b32 v{aWl}, 4, v{tau}
        v_add_u32 v{aWl}, {WL}, v{aWl}
        ds_write_b128 v{aWl}, {vr(Wraw,4)}
        ds_write_b128 v{aWl}, {vr(Wraw+4,4)} offset:4096
        s_lshl_b32 s7, s4, 2
        s_add_u32 s7, s7, {WL}
        v_lshlrev_b32 v{aWr}, 10, v3
        v_lshl_add_u32 v{aWr}, v2, 4, v{aWr}
        v_add_u32 v{aWr}, s7, v{aWr}
        s_lshr_b32 s12, s9, 1
        s_and_b32 s12, s12, 3
        s_lshr_b32 s13, s9, 3
        s_and_b32 s47, s9, 1
        s_lshl_b32 s7, s8, 10
        s_lshl_b32 s44, s12, 8
        s_add_u32 s7, s7, s44
        s_lshl_b32 s44, s13, 6
        s_add_u32 s7, s7, s44
        s_lshl_b32 s44, s47, 5
        s_add_u32 s7, s7, s44
        s_add_u32 s7, s7, {T1_OFF}
        v_lshrrev_b32 v{t}, 1, v{tau}
        v_and_b32 v{t+1}, 1, v{tau}
        v_mul_u32_u24 v{t+2}, {TS}, v{t}
        v_lshl_add_u32 v{aG}, v{t+1}, 4, v{t+2}
        v_add_u32 v{aG}, s7, v{aG}
        s_lshl_b32 s7, s12, 9
        s_lshl_b32 s44, s8, 6
        s_add_u32 s7, s7, s44
        s_lshl_b32 s44, s13, 4
        s_add_u32 s7, s7, s44
        s_lshl_b32 s44, s47, 3
        s_add_u32 s7, s7, s44
        s_add_u32 s7, s7, {T1_OFF + 8192}
        v_lshl_add_u32 v{aGc}, v{t+1}, 2, v{t+2}
        v_add_u32 v{aGc}, s7, v{aGc}
        s_add_u32 s12, s42, {128*TS}
        s_addc_u32 s13, s43, 0
        v_lshrrev_b32 v{t+3}, 4, v{t}
        v_and_b32 v{t+4}, 1, v{t+3}
        v_bfe_u32 v{t+5}, v{t+3}, 2, 1
        v_lshl_or_b32 v{t+4}, v{t+5}, 1, v{t+4}
        v_and_b32 v{t+5}, 15, v{t}
        v_xor_b32 v{t+5}, v{t+5}, v{t+4}
        v_lshlrev_b32 v{t+5}, 4, v{t+5}
        v_lshl_add_u32 v{t+5}, v{t+3}, 8, v{t+5}
        v_mul_u32_u24 v{t+6}, 4160, v{t+1}
        v_add_u32 v{t+5}, {TI}, v{t+5}
        v_add_u32 v{aGl}, v{t+5}, v{t+6}
        v_lshrrev_b32 v{t+7}, 3, v2
        v_and_b32 v{t+8}, 1, v3
        v_lshl_or_b32 v{t+8}, v{t+8}, 1, v{t+7}
        v_bfe_u32 v{t+9}, v2, 2, 1
        v_lshlrev_b32 v{t+9}, 3, v{t+9}
        v_lshl_add_u32 v{t+9}, v{t+7}, 8, v{t+9}
        v_lshl_add_u32 v{t+9}, v3, 10, v{t+9}
        v_and_b32 v{t+10}, 3, v2
        s_lshr_b32 s7, s4, 1
        s_mul_i32 s7, s7, 4160
        s_add_u32 s7, s7, {TI}
        v_lshl_add_u32 v{t+11}, v{t+10}, 6, v{t+9}
        v_add_u32 v{t+11}, s7, v{t+11}
        v_lshl_add_u32 v{t+12}, v{t+10}, 4, v{t+9}
        v_add_u32 v{t+12}, {VI}, v{t+12}"""]
        for m in range(4):
            blk += [f"v_xor_b32 v{t+13+m}, {m}, v{t+8}",
                    f"v_lshl_add_u32 v{aTI[m]}, v{t+13+m}, 4, v{t+11}",
                    f"v_lshl_add_u32 v{aVI[m]}, v{t+13+m}, 6, v{t+12}"]
        P.sched(blk, "Baddr1")
        self.gbar(CNT + 0, 4, VZ, VONE, vt)
        blk = []
        for r in range(4):
            blk += [f"ds_read_b32 v{t+20+r}, v{aWr} offset:{256*r}", f"ds_read_b32 v{t+24+r}, v{aWr} offset:{4096+256*r}"]
        for r in range(4):
            blk += [f"v_lshlrev_b32 v{Wr[0]+r}, 16, v{t+20+r}", f"v_and_b32 v{Wr[1]+r}, 0xffff0000, v{t+20+r}",
                    f"v_lshlrev_b32 v{Wi[0]+r}, 16, v{t+24+r}", f"v_and_b32 v{Wi[1]+r}, 0xffff0000, v{t+24+r}"]
        blk += [f"""s_or_b32 s7, s9, s4
        s_cmp_eq_u32 s7, 0
        s_cselect_b32 s7, 0.5, 1.0"""]
        for r in range(4): blk += [f"v_mul_f32 v{Wr[0]+r}, s7, v{Wr[0]+r}", f"v_mul_f32 v{Wi[0]+r}, s7, v{Wi[0]+r}"]
        blk += [f"""v_and_b32 v{t}, 7, v2
        v_mul_u32_u24 v{t}, 1040, v{t}
        v_lshl_add_u32 v{t}, v3, 8, v{t}
        v_lshrrev_b32 v{t+1}, 3, v2
        v_lshl_add_u32 v{t}, v{t+1}, 5, v{t}
        s_lshr_b32 s44, s4, 1
        s_lshl_b32 s44, s44, 4
        s_and_b32 s45, s4, 1
        s_lshl_b32 s45, s45, 2
        s_add_u32 s44, s44, s45
        s_add_u32 s44, s44, {VO}
        v_add_u32 v{aVO}, s44, v{t}
        s_mul_i32 s44, s4, 1040
        s_add_u32 s44, s44, {VO}
        v_lshl_add_u32 v{aVOr}, v1, 4, s44
        s_mul_i32 s44, s2, {VS}
        s_add_u32 s45, s44, {V_OFF + 2048}
        v_lshl_add_u32 v{aVst}, v{tau}, 4, s45
        s_add_u32 s45, s44, {V_OFF + 8192}
        v_lshl_add_u32 v{aVc}, v{tau}, 2, s45
        v_lshrrev_b32 v{t+2}, 1, v{tau}
        v_and_b32 v{t+3}, 1, v{tau}
        v_and_b32 v{t+4}, 31, v{t+2}
        v_lshrrev_b32 v{t+5}, 5, v{t+2}
        v_lshl_add_u32 v{t+6}, v{t+4}, 3, v{t+5}
        v_mul_u32_u24 v{t+6}, {VS}, v{t+6}
        s_lshl_b32 s44, s8, 5
        s_add_u32 s44, s44, s9
        s_lshl_b32 s45, s44, 5
        s_add_u32 s45, s45, {V_OFF}
        v_lshl_add_u32 v{aH}, v{t+3}, 4, v{t+6}
        v_add_u32 v{aH}, s45, v{aH}
        s_lshl_b32 s45, s44, 3
        s_add_u32 s45, s45, {V_OFF + 8192}
        v_lshl_add_u32 v{aHc}, v{t+3}, 2, v{t+6}
        v_add_u32 v{aHc}, s45, v{aHc}
        v_bfe_u32 v{t+7}, v{t+2}, 3, 2
        v_and_b32 v{t+8}, 1, v{t+7}
        v_and_b32 v{t+9}, 1, v{t+5}
        v_lshl_or_b32 v{t+8}, v{t+9}, 1, v{t+8}
        v_lshlrev_b32 v{t+8}, 2, v{t+8}
        v_and_b32 v{t+9}, 15, v{tau}
        v_xor_b32 v{t+9}, v{t+9}, v{t+8}
        v_lshl_add_u32 v{t+10}, v{t+5}, 2, v{t+7}
        v_lshlrev_b32 v{t+10}, 8, v{t+10}
        v_lshl_add_u32 v{t+10}, v{t+9}, 4, v{t+10}
        v_add_u32 v{aHl}, {VI}, v{t+10}
        s_lshl_b32 s44, s2, 11
        s_lshl_b32 s45, s4, 20
        s_add_u32 s44, s44, s45
        s_add_u32 s44, s44, 1024
        v_lshrrev_b32 v{t+11}, 1, v3
        v_lshlrev_b32 v{t+11}, 19, v{t+11}
        v_add_u32 v{t+11}, s44, v{t+11}
        v_and_b32 v{t+12}, 1, v3
        v_lshl_add_u32 v{t+12}, v{t+12}, 4, v2
        v_lshl_add_u32 v{aO1}, v{t+12}, 4, v{t+11}
        v_sub_u32 v{t+12}, 63, v{t+12}
        v_lshl_add_u32 v{aO2}, v{t+12}, 4, v{t+11}"""]
        P.sched(blk, "Baddr2")
        jf, cbf, g4, mk, mn, mn2 = [t + i for i in range(6)]
        blk = [f"""v_lshrrev_b32 v{t+6}, 3, v2
        v_mul_lo_u32 v{mk}, v{t+6}, {SGN}
        s_lshl_b32 s7, s4, 1
        v_add_u32 v{jf}, s7, v{t+6}
        v_cvt_f32_u32 v{jf}, v{jf}
        v_mul_f32 v{jf}, {fl(1/8)}, v{jf}
        v_and_b32 v{cbf}, 7, v2
        v_cvt_f32_u32 v{cbf}, v{cbf}
        v_mul_f32 v{cbf}, {fl(1/8)}, v{cbf}
        v_cvt_f32_u32 v{g4}, v3
        v_mul_f32 v{t+7}, v{jf}, v{g4}
        v_mul_f32 v{g4}, 4.0, v{g4}
        v_cvt_f32_u32 v{t+8}, v2
        v_add_f32 v{t+8}, 0.5, v{t+8}
        v_mul_f32 v{t+8}, {fl(1/64)}, v{t+8}
        v_mul_f32 v{t+9}, v{g4}, v{t+8}
        v_mul_f32 v{t+10}, {fl(16.0)}, v{t+8}
        v_add_f32 v{t+10}, v{t+10}, v{t+9}
        v_and_b32 v{t+11}, 1, v2
        v_mul_lo_u32 v{mn}, v{t+11}, {SGN}
        v_xor_b32 v{mn2}, {SGN}, v{mn}
        v_mul_f32 v{t+12}, v{jf}, v{g4}
        v_cvt_f32_u32 v{t+13}, v{t+11}
        v_fma_f32 v{t+13}, v{t+13}, -2.0, 1.0
        v_cmp_gt_u32 vcc, 2, v3
        v_cndmask_b32 v{t+13}, 0, v{t+13}, vcc"""]
        blk += self.pairs(t + 7, cbf, 4, tm, tm + 4, t + 16)
        for m in range(4):
            blk += [cvt(Pre[0] + m, tm + m, tm + 4 + m, False, True), cvt(Pim[0] + m, tm + 4 + m, tm + m),
                    f"v_xor_b32 v{Pre[1]+m}, v{Pre[0]+m}, v{mk}", f"v_xor_b32 v{Pim[1]+m}, v{Pim[0]+m}, v{mk}"]
        blk += self.pairs(t + 9, t + 8, 4, c_, s_, t + 20)
        blk += self.pairs(t + 10, t + 8, 4, c_ + 4, s_ + 4, t + 24)
        for d in range(4):
            c0, c1, s0, s1 = c_ + 2*d, c_ + 2*d + 1, s_ + 2*d, s_ + 2*d + 1
            blk += [cvt(COS[0][0] + d, c0, c1), cvt(SIN[0][0] + d, s0, s1)]
            if d % 2 == 0: blk += [cvt(COS[0][1] + d, c0, s1, False, True), cvt(SIN[0][1] + d, s0, c1)]
            else: blk += [cvt(COS[0][1] + d, c0, s1, True, False), cvt(SIN[0][1] + d, s0, c1, True, True)]
            for ct in range(2):
                blk += [f"v_xor_b32 v{COS[1][ct]+d}, v{SIN[0][ct]+d}, v{mn2}", f"v_xor_b32 v{SIN[1][ct]+d}, v{COS[0][ct]+d}, v{mn}"]
        blk += self.pairs(t + 12, jf, 4, tm + 8, tm + 12, t + 28)
        for m in range(4):
            blk += [f"v_mul_f32 v{tm+8+m}, v{t+13}, v{tm+8+m}", f"v_mul_f32 v{tm+12+m}, v{t+13}, v{tm+12+m}",
                    cvt(NQ + m, tm + 8 + m, tm + 12 + m, False, True)]
        P.sched(blk, "B3c1")
        self.stamp()
        R.release(m0)
        G0, G1 = R.get(4, 4), R.get(4, 4); gc0, gc1, gt0, gt1 = R.get(), R.get(), R.get(), R.get()
        loads = f"""global_load_dwordx4 {vr(G0,4)}, v{aG}, s[42:43] sc1
        global_load_dwordx4 {vr(G1,4)}, v{aG}, s[12:13] sc1
        global_load_dword v{gc0}, v{aGc}, s[42:43] sc1
        global_load_dword v{gc1}, v{aGc}, s[12:13] sc1"""
        P(loads)
        nloads = ""
        for e in range(4):
            nloads += f"global_load_dwordx2 {vr(NT+2*e,2)}, v{aNT}, s[{50+2*e}:{51+2*e}] sc1\n"
        lsk = self.L("nt")
        P(f"s_cmp_eq_u32 s46, 3\ns_cbranch_scc0 {lsk}")
        P.cond = "nyq"
        P(f"""s_lshl_b32 s7, s8, 3
        s_add_u32 s7, s7, {T1_OFF + 10240}
        v_mul_u32_u24 v{aNT}, {TS}, v1
        v_add_u32 v{aNT}, s7, v{aNT}""")
        for e in range(4):
            P(f"s_add_u32 s{50+2*e}, s42, {64*e*TS}\ns_addc_u32 s{51+2*e}, s43, 0")
        P(nloads)
        P.cond = None
        P(f"{lsk}:")
        self.validate(loads, self.chk16(G0, G1, gc0, gc1, gt0, gt1))
        self.stamp()
        P(f"""ds_write_b128 v{aGl}, {vr(G0,4)}
        ds_write_b128 v{aGl}, {vr(G1,4)} offset:2048""")
        self.gbar(CNT + 4, 4, VZ, VONE, vt)
        if not self.nonce:
            lsk = self.L("ep")
            P(f"""s_or_b32 s7, s2, s4
            s_cmp_eq_u32 s7, 0
            s_cbranch_scc0 {lsk}""")
            P.cond = "ep"
            P(f"""s_add_u32 s7, s6, 1
            v_mov_b32 v{gt0}, s7
            v_mov_b32 v{gt1}, {EP_OFF}
            s_mov_b64 exec, 1
            global_store_dword v{gt1}, v{gt0}, s[42:43] sc1
            s_mov_b64 exec, -1""")
            P.cond = None
            P(f"{lsk}:")
        R.release(m0)
        TA = [R.get(4) for _ in range(4)]
        D1re = [R.get(4) for _ in range(4)]; D1im = [R.get(4) for _ in range(4)]
        F = [R.get(4), R.get(4)]; Xre = [R.get(4), R.get(4)]; Xim = [R.get(4), R.get(4)]
        tq = [R.get(8), R.get(8)]
        def tail(Ff, xr, xi, wr, wi, q, vre, vim):
            o = [mf(xr, M2re, Ff), mf(xi, M2im, Ff)]
            for r in range(4):
                u = q + 4 * (r % 2)
                o += self.cmul(xr + r, xi + r, wr + r, wi + r, u + 2, u + 3, u, u + 1, False) + [cvt(Ff + r, u + 2, u + 3)]
            o += [mf(xr, Ff, M2cre), mf(xi, Ff, M2cim)]
            for r in range(4):
                u = q + 4 * (r % 2)
                o += self.cmul(xr + r, xi + r, TIc + r, TIs + r, u + 2, u + 3, u, u + 1, False) + [cvt(Ff + r, u + 2, u + 3)]
            o += [mf(vre, M1cre, Ff), mf(vim, M1cim, Ff)]
            return o
        lodd, ljoin = self.L("odd"), self.L("join")
        P(f"s_bitcmp1_b32 s4, 0\ns_cbranch_scc1 {lodd}".replace("s_bitcmp1_b32 s4, 0", "s_and_b32 s7, s4, 1"))
        for par in range(2):
            P.cond = f"par:{par}"
            blk = []
            for m in range(4):
                for hh in range(2): blk.append(f"ds_read_b64_tr_b16 {vr(TA[m]+2*hh,2)}, v{aTI[m]} offset:{512*hh}")
            for m in range(4): blk += [mf(D1re[m], TA[m], M1re), mf(D1im[m], TA[m], M1im)]
            for f in range(2):
                for m in range(4):
                    u = tq[f] + 4 * (m % 2)
                    blk += self.cmul(D1re[m] + 2*par + f, D1im[m] + 2*par + f, TFc + m, TFs + m, u + 2, u + 3, u, u + 1, True) + [cvt(F[f] + m, u + 2, u + 3)]
            Vre = [TA[0], TA[1]]; Vim = [TA[2], TA[3]]
            for f in range(2): blk += tail(F[f], Xre[f], Xim[f], Wr[f], Wi[f], tq[f], Vre[f], Vim[f])
            for r in range(4):
                blk += [cvt(F[0] + r, Vre[0] + r, Vre[1] + r), cvt(F[1] + r, Vim[0] + r, Vim[1] + r),
                        f"ds_write2_b32 v{aVO}, v{F[0]+r}, v{F[1]+r} offset0:{16*r} offset1:{16*r+2}"]
            P.sched(blk, f"B2p{par}")
            if par == 0:
                P(f"s_branch {ljoin}")
                P.cond = None
                P(f"{lodd}:")
        P.cond = None
        P(f"{ljoin}:")
        self.gbar(CNT + 8, 4, VZ, VONE, vt)
        O0, O1 = D1re[0], D1re[1]; cs = D1re[2]
        blk = [f"ds_read_b128 {vr(O0,4)}, v{aVOr}", f"ds_read_b128 {vr(O1,4)}, v{aVOr} offset:4160",
               f"global_store_dwordx4 v{aVst}, {vr(O0,4)}, s[42:43] offset:-2048 sc1",
               f"global_store_dwordx4 v{aVst}, {vr(O1,4)}, s[42:43] offset:2048 sc1"]
        blk += self.csum(O0, cs) + [f"global_store_dword v{aVc}, v{cs}, s[42:43] sc1"]
        blk += self.csum(O1, cs + 1) + [f"global_store_dword v{aVc}, v{cs+1}, s[42:43] offset:1024 sc1"]
        P.sched(blk, "B2out")
        self.stamp()
        lsk = self.L("n2")
        P(f"s_cmp_eq_u32 s46, 3\ns_cbranch_scc0 {lsk}")
        P.cond = "nyq"
        chk = ""
        for e in range(4):
            chk += f"v_add_u32 v{tq[0]+e}, s5, v{NT+2*e}\n"
        chk += f"v_cmp_ne_u32 s[10:11], v{tq[0]}, v{NT+1}\n"
        for e in range(1, 4):
            chk += f"v_cmp_ne_u32 vcc, v{tq[0]+e}, v{NT+2*e+1}\ns_or_b64 s[10:11], s[10:11], vcc\n"
        self.validate(nloads, chk)
        blk = [f"""v_lshlrev_b32 v{tq[1]}, 6, v2
        v_lshl_add_u32 v{tq[1]+1}, v3, 2, v{tq[1]}
        v_add_u32 v{tq[1]+1}, {NL}, v{tq[1]+1}
        v_lshl_add_u32 v{tq[1]+2}, v3, 4, v{tq[1]}
        v_add_u32 v{tq[1]+2}, {NL}, v{tq[1]+2}"""]
        for e in range(4): blk.append(f"ds_write_b32 v{tq[1]+1}, v{NT+2*e} offset:{16*e}")
        blk.append(f"ds_read_b128 {vr(TA[0],4)}, v{tq[1]+2}")
        for r in range(8):
            blk += [f"v_lshlrev_b32 v{NW+r}, 16, v{NW+r}", f"v_mul_f32 v{NW+r}, 0.5, v{NW+r}"]
        blk += [mf(D1re[3], TA[0], M1re), mf(D1im[3], TA[0], M1im)]
        for r in range(4):
            u = tq[0] + 4 * (r % 2)
            blk += self.cmul(D1re[3] + r, D1im[3] + r, TFc + r, TFs + r, u + 2, u + 3, u, u + 1, True) + [cvt(F[0] + r, u + 2, u + 3)]
        blk += tail(F[0], Xre[0], Xim[0], NW, NW + 4, tq[0], Xre[1], Xim[1])
        blk += [f"""s_lshl_b32 s7, s8, 11
        s_add_u32 s7, s7, {VN_OFF}
        v_lshlrev_b32 v{tq[1]+3}, 9, v3
        v_lshl_add_u32 v{tq[1]+3}, v2, 3, v{tq[1]+3}
        v_add_u32 v{tq[1]+3}, s7, v{tq[1]+3}"""]
        for r in range(4):
            blk += [cvt(NT + 2*r, Xre[1] + r, Xim[1] + r), f"v_add_u32 v{NT+2*r+1}, s5, v{NT+2*r}",
                    f"global_store_dwordx2 v{tq[1]+3}, {vr(NT+2*r,2)}, s[42:43] offset:{128*r} sc1"]
        P.sched(blk, "B2n")
        P.cond = None
        P(f"{lsk}:")
        R.release(m0)
        Q = Regs(b2_lo, b2_hi)
        T3c = Q.get(16); T3s = Q.get(16); aVN = Q.get(); NV = Q.get(8, 2); ND = Q.get(4, 2)
        m1 = R.mark()
        t = R.get(24)
        blk = [f"""v_and_b32 v{t}, 7, v2
        v_add_u32 v{t}, -4, v{t}
        v_cvt_f32_i32 v{t}, v{t}
        v_mul_f32 v{t}, {fl(1/512)}, v{t}
        v_lshlrev_b32 v{t+1}, 2, v3
        v_cvt_f32_u32 v{t+1}, v{t+1}
        v_mul_f32 v{t+2}, v{t+1}, v{t}
        v_mul_f32 v{t+6}, {fl(16.0)}, v{t}
        v_add_f32 v{t+3}, v{t+2}, v{t+6}
        v_add_f32 v{t+4}, v{t+3}, v{t+6}
        v_add_f32 v{t+5}, v{t+4}, v{t+6}
        s_lshl_b32 s7, s2, 3
        s_add_u32 s7, s7, {VN_OFF + 4096}
        v_and_b32 v{aVN}, 1, v3
        v_lshlrev_b32 v{aVN}, 13, v{aVN}
        v_add_u32 v{aVN}, s7, v{aVN}
        s_add_u32 s12, s42, {4*VS}
        s_addc_u32 s13, s43, 0"""]
        for tt in range(4): blk += self.pairs(t + 2 + tt, t, 4, T3c + 4*tt, T3s + 4*tt, t + 8 + 4*tt)
        P.sched(blk, "B3c2")
        self.stamp()
        R.release(m1)
        G0, G1 = R.get(4, 4), R.get(4, 4); gc0, gc1, gt0, gt1 = R.get(), R.get(), R.get(), R.get()
        loads = f"""global_load_dwordx4 {vr(G0,4)}, v{aH}, s[42:43] sc1
        global_load_dwordx4 {vr(G1,4)}, v{aH}, s[12:13] sc1
        global_load_dword v{gc0}, v{aHc}, s[42:43] sc1
        global_load_dword v{gc1}, v{aHc}, s[12:13] sc1"""
        P(loads)
        self.validate(loads, self.chk16(G0, G1, gc0, gc1, gt0, gt1))
        self.stamp()
        vloads = "".join(f"global_load_dwordx2 {vr(NV+2*m,2)}, v{aVN}, s[42:43] offset:{2048*m-4096} sc1\n" for m in range(4))
        P(f"""ds_write_b128 v{aHl}, {vr(G0,4)}
        ds_write_b128 v{aHl}, {vr(G1,4)} offset:4096""")
        P(vloads)
        self.gbar(CNT + 12, 4, VZ, VONE, vt)
        R.release(m1)
        VA = [[R.get(4) for _ in range(2)] for _ in range(4)]
        Dre = [R.get(4) for _ in range(4)]; Dim = [R.get(4) for _ in range(4)]
        tp = R.get(16)
        DR = [VA[0][0], VA[1][0]]; DI = [VA[0][1], VA[1][1]]
        Cc = [VA[2][0], VA[2][1]]; Sc = [VA[3][0], VA[3][1]]
        blk = []
        for tt in range(4):
            for ks in range(2):
                for hh in range(2):
                    blk.append(f"ds_read_b64_tr_b16 {vr(VA[tt][ks]+2*hh,2)}, v{aVI[tt]} offset:{4096*ks+512*hh}")
        for tt in range(4):
            blk += [mf(Dre[tt], VA[tt][0], Pre[0]), mf(Dim[tt], VA[tt][0], Pim[0]),
                    mf(Dre[tt], VA[tt][1], Pre[1], Dre[tt]), mf(Dim[tt], VA[tt][1], Pim[1], Dim[tt])]
        for tt in range(4):
            for r in range(4):
                q = tp + 4 * r
                blk += self.cmul(Dre[tt] + r, Dim[tt] + r, T3c + 4*tt + r, T3s + 4*tt + r, q + 2, q + 3, q, q + 1, False)
                if r % 2 == 1:
                    d = 2 * (tt % 2) + r // 2
                    blk += [cvt(DR[tt // 2] + d, q - 2, q + 2), cvt(DI[tt // 2] + d, q - 1, q + 3)]
        for kk in range(2):
            for ct in range(2):
                blk += [mf(Cc[ct], DR[kk], COS[kk][ct], Cc[ct] if kk else None), mf(Sc[ct], DI[kk], SIN[kk][ct], Sc[ct] if kk else None)]
        P.sched(blk, "B3")
        chk = ""
        for m in range(4): chk += f"v_add_u32 v{tp+m}, s5, v{NV+2*m}\n"
        chk += f"v_cmp_ne_u32 s[10:11], v{tp}, v{NV+1}\n"
        for m in range(1, 4): chk += f"v_cmp_ne_u32 vcc, v{tp+m}, v{NV+2*m+1}\ns_or_b64 s[10:11], s[10:11], vcc\n"
        self.validate(vloads, chk)
        Y1, Y2 = Dre[0], Dre[1]
        blk = [f"v_mov_b32 v{ND+m}, v{NV+2*m}" for m in range(4)]
        blk += [mf(Cc[0], NQ, ND, Cc[0]), mf(Cc[1], NQ, ND, Cc[1])]
        for ct in range(2):
            for r in range(4):
                blk += [f"v_sub_f32 v{tp+8*ct+r}, v{Cc[ct]+r}, v{Sc[ct]+r}", f"v_add_f32 v{tp+8*ct+4+r}, v{Cc[ct]+r}, v{Sc[ct]+r}"]
            for d in range(2):
                blk += [cvt(Y1 + 2*ct + d, tp + 8*ct + 2*d, tp + 8*ct + 2*d + 1), cvt(Y2 + 2*ct + d, tp + 8*ct + 4 + 2*d, tp + 8*ct + 5 + 2*d)]
        for Y, a in ((Y1, aO1), (Y2, aO2)):
            blk += [f"v_permlane16_swap_b32 v{Y}, v{Y+2}", f"v_permlane16_swap_b32 v{Y+1}, v{Y+3}",
                    f"global_store_dwordx4 v{a}, {vr(Y,4)}, s[40:41]"]
        P.sched(blk, "B3out")
        self.stamp()
        self.dump_stamps(tp)
        P("s_endpgm")
        self.vmaxB = R.hi

    def role_A(self):
        P = self.P; R = Regs(7, 256); cvt = self.cvt; mf = self.mf
        VZ, VONE = 5, 6
        self.nst = 1
        P("L_A:")
        P.reset_state()
        vt = R.get(); vP = R.get(); tau = R.get()
        prm = R.get(8); DK = R.get(4, 4)
        aTR0, aTR1, aUst, aUc = [R.get() for _ in range(4)]
        aUG, aUGc, aUU, aKA, aUB = [R.get() for _ in range(5)]
        aFW, aFA0, aFA1, aFB, aK0, aK1, aK2, aKRw = [R.get() for _ in range(8)]
        aE = R.get(19)
        aRw, aRr, aYst, aYc, aYG, aYGc, aYw0, aYw1, aYR0, aYR1, aUR0, aUR1, aOA = [R.get() for _ in range(13)]
        m0 = R.mark()
        t = R.get(48, 4)
        P(f"""s_sub_u32 s4, s3, 4
        s_lshr_b32 s44, s4, 1
        s_and_b32 s45, s4, 1
        s_lshl_b32 s7, s2, 1
        s_add_u32 s7, s7, s44
        s_lshl_b32 s12, s7, 8
        s_lshl_b32 s13, s45, 7
        s_add_u32 s12, s12, s13
        v_lshl_add_u32 v{t}, v1, 1, s12
        s_lshl_b32 s7, s7, 1
        v_mov_b32 v{t+1}, s7
        v_lshrrev_b32 v{t+2}, 3, v1
        v_bfe_u32 v{t+3}, v1, 4, 1
        s_lshl_b32 s12, s45, 2
        v_or_b32 v{t+3}, s12, v{t+3}
        v_and_b32 v{t+4}, 7, v1
        v_xor_b32 v{t+4}, v{t+4}, v{t+3}
        v_xor_b32 v{t+5}, 2, v{t+4}
        s_lshl_b32 s12, s9, 16
        s_lshl_b32 s13, s4, 14
        s_add_u32 s12, s12, s13
        s_lshl_b32 s13, s8, 7
        s_add_u32 s12, s12, s13
        v_lshlrev_b32 v{t+2}, 10, v{t+2}
        v_add_u32 v{t+2}, s12, v{t+2}
        v_lshl_add_u32 v{t+4}, v{t+4}, 4, v{t+2}
        v_lshl_add_u32 v{t+5}, v{t+5}, 4, v{t+2}
        v_add_u32 v{t+5}, 8192, v{t+5}
        s_lshl_b32 s12, s4, 11
        s_add_u32 s12, s12, {UTL}
        s_mov_b32 m0, s12
        s_waitcnt lgkmcnt(0)
        global_load_lds_dwordx4 v{t+4}, s[16:17]
        s_add_u32 s12, s12, 1024
        s_mov_b32 m0, s12
        v_lshrrev_b32 v{t+6}, 1, v3
        global_load_lds_dwordx4 v{t+5}, s[16:17]""")
        for k in range(6): P(f"global_load_ushort v{prm+k}, v{t}, s[{18+2*k}:{19+2*k}]")
        P(f"""global_load_ushort v{prm+6}, v{t+1}, s[30:31]
        v_lshrrev_b32 v{t+7}, 2, v2
        v_lshl_add_u32 v{t+8}, v{t+6}, 2, v{t+7}
        s_lshl_b32 s12, s8, 7
        v_lshl_add_u32 v{t+9}, v{t+8}, 4, s12
        global_load_dwordx4 {vr(DK,4)}, v{t+9}, s[32:33]""")
        self.epoch()
        self.stamp()
        z = t + 12
        g1, c3, n3, e3, g0 = t + 6, t + 10, t + 11, t + 16, t + 17
        oc = t + 8
        blk = [f"""v_mov_b32 v{z}, 0
        v_mov_b32 v{z+1}, 0
        v_mov_b32 v{z+2}, 0
        v_mov_b32 v{z+3}, 0
        s_lshl_b32 s7, s44, 4
        s_add_u32 s7, s7, {CNT + 32}
        v_mov_b32 v{vP}, s7
        s_lshl_b32 s7, s4, 6
        v_add_u32 v{tau}, s7, v1
        s_mul_i32 s7, s44, 4576
        s_add_u32 s7, s7, {UU}
        v_lshl_add_u32 v{t+18}, v1, 4, s7
        ds_write_b128 v{t+18}, {vr(z,4)}
        v_bfe_u32 v{t+19}, v1, 1, 2
        v_mul_u32_u24 v{t+19}, 4160, v{t+19}
        v_and_b32 v{t+20}, 1, v1
        v_lshl_add_u32 v{t+19}, v{t+20}, 4, v{t+19}
        s_mul_i32 s12, s44, 16640
        s_add_u32 s7, s12, {KR + 4096}
        v_add_u32 v{t+19}, s7, v{t+19}
        ds_write_b128 v{t+19}, {vr(z,4)}
        s_mul_i32 s13, s44, 1600
        s_add_u32 s13, s13, {KC}
        v_mov_b32 v{t+20}, s13
        ds_write_b128 v{t+20}, {vr(z,4)}
        s_add_u32 s13, s13, 16
        v_and_b32 v{c3}, 3, v2
        v_lshrrev_b32 v{n3}, 3, v2
        v_and_b32 v{g0}, 1, v3
        v_lshl_add_u32 v{t+21}, v{g1}, 2, v{c3}
        v_lshlrev_b32 v{t+21}, 10, v{t+21}
        v_lshl_add_u32 v{t+21}, v{t+7}, 7, v{t+21}
        v_lshl_add_u32 v{t+21}, v{g0}, 3, v{t+21}
        v_lshl_add_u32 v{t+22}, v{c3}, 1, v{n3}
        s_lshl_b32 s7, s4, 1
        v_xor_b32 v{t+23}, s7, v{t+22}
        v_lshl_add_u32 v{aTR0}, v{t+23}, 4, v{t+21}
        v_add_u32 v{aTR0}, {UTL}, v{aTR0}
        v_xor_b32 v{t+24}, 1, v{t+23}
        v_lshl_add_u32 v{aTR1}, v{t+24}, 4, v{t+21}
        v_add_u32 v{aTR1}, {UTL}, v{aTR1}
        v_lshl_add_u32 v{aYR0}, v{t+23}, 4, v{t+21}
        v_add_u32 v{aYR0}, {YTL}, v{aYR0}
        v_lshl_add_u32 v{aYR1}, v{t+24}, 4, v{t+21}
        v_add_u32 v{aYR1}, {YTL}, v{aYR1}
        v_lshl_add_u32 v{e3}, v{g0}, 2, v{c3}
        s_mul_i32 s7, s2, {US}
        s_lshl_b32 s46, s4, 11
        s_add_u32 s46, s46, s7
        s_add_u32 s46, s46, {UT_OFF}
        v_lshlrev_b32 v{t+25}, 7, v{e3}
        v_lshl_add_u32 v{t+25}, v{oc}, 4, v{t+25}
        v_add_u32 v{aUst}, s46, v{t+25}
        s_lshl_b32 s46, s4, 9
        s_add_u32 s46, s46, s7
        s_add_u32 s46, s46, {UT_OFF + 8192}
        v_lshlrev_b32 v{t+26}, 5, v{e3}
        v_lshl_add_u32 v{t+26}, v{oc}, 2, v{t+26}
        v_add_u32 v{aUc}, s46, v{t+26}
        s_lshl_b32 s46, s4, 11
        s_add_u32 s46, s46, {UTL}
        v_bfe_u32 v{t+27}, v2, 1, 1
        s_lshl_b32 s47, s45, 2
        v_or_b32 v{t+27}, s47, v{t+27}
        v_xor_b32 v{t+27}, v{t+27}, v{oc}
        v_lshlrev_b32 v{t+28}, 7, v{e3}
        v_add_u32 v{t+28}, s46, v{t+28}
        v_lshl_add_u32 v{aUR0}, v{t+27}, 4, v{t+28}
        v_xor_b32 v{t+27}, 2, v{t+27}
        v_lshl_add_u32 v{aUR1}, v{t+27}, 4, v{t+28}
        s_lshl_b32 s46, s9, 17
        s_lshl_b32 s47, s4, 15
        s_add_u32 s46, s46, s47
        s_lshl_b32 s47, s8, 7
        s_add_u32 s46, s46, s47
        v_lshlrev_b32 v{t+29}, 11, v{e3}
        v_lshl_add_u32 v{t+29}, v{oc}, 4, v{t+29}
        v_add_u32 v{aOA}, s46, v{t+29}
        v_lshrrev_b32 v{t+30}, 3, v{tau}
        v_and_b32 v{t+31}, 7, v{tau}
        v_mul_u32_u24 v{t+32}, {8*US}, v{t+30}
        s_lshr_b32 s46, s2, 5
        s_mul_i32 s46, s46, {US}
        s_lshl_b32 s47, s2, 1
        s_and_b32 s47, s47, 63
        s_lshl_b32 s7, s47, 7
        s_add_u32 s7, s7, s46
        s_add_u32 s7, s7, {UT_OFF}
        v_lshl_add_u32 v{aUG}, v{t+31}, 4, v{t+32}
        v_add_u32 v{aUG}, s7, v{aUG}
        s_lshl_b32 s7, s47, 5
        s_add_u32 s7, s7, s46
        s_add_u32 s7, s7, {UT_OFF + 8192}
        v_lshl_add_u32 v{aUGc}, v{t+31}, 2, v{t+32}
        v_add_u32 v{aUGc}, s7, v{aUGc}
        v_lshlrev_b32 v{aUU}, 4, v{tau}
        v_add_u32 v{aUU}, {UU + 480}, v{aUU}
        v_mul_u32_u24 v{t+33}, {YS}, v{t+30}
        s_mul_i32 s46, s8, {32*YS}
        s_lshl_b32 s7, s9, 7
        s_add_u32 s7, s7, s46
        s_add_u32 s7, s7, {YT_OFF + 2048}
        v_lshl_add_u32 v{aYG}, v{t+31}, 4, v{t+33}
        v_add_u32 v{aYG}, s7, v{aYG}
        s_lshl_b32 s7, s9, 5
        s_add_u32 s7, s7, s46
        s_add_u32 s7, s7, {YT_OFF + 8192}
        v_lshl_add_u32 v{aYGc}, v{t+31}, 2, v{t+33}
        v_add_u32 v{aYGc}, s7, v{aYGc}
        v_bfe_u32 v{t+34}, v{t+30}, 2, 2
        v_and_b32 v{t+35}, 1, v{t+30}
        v_lshl_or_b32 v{t+34}, v{t+34}, 1, v{t+35}
        v_xor_b32 v{t+34}, v{t+34}, v{t+31}
        v_lshlrev_b32 v{t+34}, 4, v{t+34}
        v_lshl_add_u32 v{t+34}, v{t+30}, 8, v{t+34}
        v_add_u32 v{aYw0}, {YTL}, v{t+34}
        v_xor_b32 v{t+36}, 3, v{c3}
        v_mul_u32_u24 v{t+36}, 4160, v{t+36}
        v_lshl_add_u32 v{t+36}, v3, 4, v{t+36}
        v_lshlrev_b32 v{t+37}, 3, v{t+7}
        v_sub_u32 v{t+36}, v{t+36}, v{t+37}
        s_lshl_b32 s46, s45, 8
        s_sub_u32 s7, s12, s46
        s_add_u32 s7, s7, {KR + 24 + 256}
        v_add_u32 v{aKA}, s7, v{t+36}
        s_mul_i32 s7, s44, 4576
        s_sub_u32 s7, s7, s46
        s_add_u32 s7, s7, {UU + 256}
        v_lshlrev_b32 v{t+38}, 5, v2
        v_lshl_add_u32 v{t+38}, v3, 4, v{t+38}
        v_add_u32 v{aUB}, s7, v{t+38}
        s_mul_i32 s7, s4, {FACW}
        s_add_u32 s7, s7, {FAC}
        v_lshl_add_u32 v{aFW}, v1, 2, s7
        s_mul_i32 s7, s44, {2*FACW}
        s_add_u32 s7, s7, {FAC}
        v_lshl_add_u32 v{t+39}, v3, 4, s7
        v_mul_u32_u24 v{t+40}, 272, v2
        v_add_u32 v{aFA0}, v{t+39}, v{t+40}
        s_mul_i32 s7, s45, {16*272}
        s_add_u32 s7, s7, {21*272}
        v_add3_u32 v{aFB}, v{t+39}, v{t+40}, s7
        v_add_u32 v{t+41}, 16, v{t+7}
        v_cmp_eq_u32 vcc, 1, v{c3}
        v_cndmask_b32 v{t+41}, v{t+41}, 20, vcc
        v_mul_u32_u24 v{t+41}, 272, v{t+41}
        v_add_u32 v{aFA1}, v{t+39}, v{t+41}
        s_lshl_b32 s7, s45, 4
        v_add_u32 v{t+42}, s7, v2
        v_lshlrev_b32 v{t+43}, 4, v{t+42}
        v_lshl_add_u32 v{t+43}, v3, 3, v{t+43}
        v_lshlrev_b32 v{t+44}, 3, v{t+42}
        v_add_u32 v{t+44}, 512, v{t+44}
        v_lshlrev_b32 v{t+45}, 2, v{t+42}
        v_add_u32 v{t+45}, 768, v{t+45}
        v_cmp_eq_u32 vcc, 2, v3
        v_cndmask_b32 v{t+43}, v{t+43}, v{t+44}, vcc
        v_mov_b32 v{t+46}, 4
        v_mov_b32 v{t+47}, 128
        v_cmp_eq_u32 vcc, 3, v3
        v_cndmask_b32 v{t+43}, v{t+43}, v{t+45}, vcc
        v_cndmask_b32 v{t+46}, v{t+46}, v{t+47}, vcc
        v_add_u32 v{aK0}, s13, v{t+43}
        v_add_u32 v{aK1}, v{aK0}, v{t+46}
        v_lshlrev_b32 v{t+44}, 6, v3
        v_lshl_add_u32 v{t+44}, v{t+42}, 1, v{t+44}
        s_add_u32 s7, s13, 1024
        v_add_u32 v{aK2}, s7, v{t+44}
        s_lshl_b32 s7, s45, 11
        s_add_u32 s7, s7, s12
        s_add_u32 s7, s7, {KR}
        v_lshl_add_u32 v{aKRw}, v1, 5, s7
        s_lshl_b32 s7, s4, 12
        s_add_u32 s7, s7, {RED}
        v_lshl_add_u32 v{aRw}, v1, 4, s7
        s_xor_b32 s7, s4, 1
        s_lshl_b32 s7, s7, 12
        s_add_u32 s7, s7, {RED}
        v_lshl_add_u32 v{aRr}, v1, 4, s7
        v_lshlrev_b32 v{t+45}, 5, v{g0}
        v_lshl_add_u32 v{t+45}, v2, 1, v{t+45}
        v_add_u32 v{t+45}, v{t+45}, v{g1}
        s_lshl_b32 s7, s4, 7
        v_add_u32 v{t+45}, s7, v{t+45}
        s_mul_i32 s7, s2, {YS}
        s_add_u32 s46, s7, {YT_OFF}
        v_lshl_add_u32 v{aYst}, v{t+45}, 4, s46
        s_add_u32 s46, s7, {YT_OFF + 8192}
        v_lshl_add_u32 v{aYc}, v{t+45}, 2, s46"""]
        P.sched(blk, "Aaddr")
        blk = [f"""s_lshl_b32 s7, s45, 6
        v_add_u32 v{t}, s7, v1
        v_cmp_le_u32 vcc, 112, v{t}
        v_lshlrev_b32 v{t}, 4, v{t}
        v_sub_u32 v{t}, 2047, v{t}
        v_cvt_f32_i32 v{t+2}, v{t}
        v_lshl_add_u32 v{t+1}, v{t}, 1, s13
        s_sub_u32 s46, s13, {2*(0x4300-128)}"""]
        for y in range(1, 20): blk.append(f"v_add_f32 v{t+2+y}, {fl(-float(y))}, v{t+2}")
        for y in range(0, 19, 2):
            d = t + 24 + y // 2
            blk.append(cvt(d, t + 2 + y, t + 3 + y))
            for h in range(2):
                if y + h > 18: continue
                blk += [f"v_mad_u32_u16 v{aE+y+h}, v{d}, 2, s46 op_sel:[{h},0,0,0]",
                        f"v_add_u32 v{t+36+(y+h)%4}, {-2*(y+h)}, v{t+1}",
                        f"v_cndmask_b32 v{aE+y+h}, v{aE+y+h}, v{t+36+(y+h)%4}, vcc"]
        P.sched(blk, "Aexp")
        P("s_waitcnt vmcnt(0)" if self.strict else "s_waitcnt vmcnt(8)")
        self.tag(vt)
        self.stamp()
        R.release(m0)
        TU = [R.get(4, 4), R.get(4, 4)]; cs = R.get(2)
        blk = []
        for s in range(2):
            for hh in range(2): blk.append(f"ds_read_b64_tr_b16 {vr(TU[s]+2*hh,2)}, v{(aTR0, aTR1)[s]} offset:{512*hh}")
        for s in range(2): blk.append(f"global_store_dwordx4 v{aUst}, {vr(TU[s],4)}, s[42:43] offset:{1024*s} sc1")
        for s in range(2): blk += self.csum(TU[s], cs + s) + [f"global_store_dword v{aUc}, v{cs+s}, s[42:43] offset:{256*s} sc1"]
        P.sched(blk, "A0")
        self.stamp()
        t = R.get(16); w1 = R.get(2); w8 = R.get(2); w256 = R.get(2)
        H = [R.get(2) for _ in range(21)]; E = [R.get(2) for _ in range(4)]; pt = [R.get(2) for _ in range(4)]; cw = R.get(8)
        L2E = math.log2(math.e); Lhi = struct.unpack("<f", struct.pack("<f", L2E))[0]; Llo = L2E - Lhi
        are, aim, bre, bim, cre, cim, ld = [prm + k for k in range(7)]
        blk = [f"v_lshlrev_b32 v{prm+k}, 16, v{prm+k}" for k in range(7)]
        blk += [f"""s_mov_b32 s46, {fl(Lhi)}
        s_mov_b32 s47, {fl(Llo)}
        v_mul_f32 v{t}, s46, v{ld}
        v_fma_f32 v{t+1}, v{ld}, s46, -v{t}
        v_fma_f32 v{t+1}, v{ld}, s47, v{t+1}
        v_exp_f32 v{t+2}, v{t}
        v_mul_f32 v{t+1}, {fl(math.log(2))}, v{t+1}
        v_fma_f32 v{t+2}, v{t+2}, v{t+1}, v{t+2}
        v_cvt_pk_bf16_f32 v{t+2}, v{t+2}, v{t+2}
        v_and_b32 v{t+2}, 0xffff0000, v{t+2}
        v_mul_f32 v{are}, v{t+2}, v{are}
        v_mul_f32 v{aim}, v{t+2}, v{aim}
        v_mul_f32 v{bre}, v{t+2}, v{bre}
        v_mul_f32 v{bim}, v{t+2}, v{bim}
        v_mul_f32 v{are}, s46, v{are}
        v_mul_f32 v{aim}, {fl(1/(2*math.pi))}, v{aim}
        v_mul_f32 v{t+3}, v{cim}, v{bim}
        v_mul_f32 v{t+4}, v{cim}, v{bre}
        v_fma_f32 v{H[0]}, v{cre}, v{bre}, -v{t+3}
        v_fma_f32 v{H[0]+1}, v{cre}, v{bim}, v{t+4}"""]
        for i, (Mv, wd) in enumerate(((8.0, w8), (1.0, w1), (256.0, w256))):
            u = t + 5 + 3 * i
            blk += [f"v_mul_f32 v{u}, {fl(Mv)}, v{are}", f"v_mul_f32 v{u+1}, {fl(Mv)}, v{aim}", f"v_exp_f32 v{u}, v{u}",
                    f"v_fract_f32 v{u+1}, v{u+1}", f"v_cos_f32 v{u+2}, v{u+1}", f"v_sin_f32 v{u+1}, v{u+1}",
                    f"v_mul_f32 v{wd}, v{u}, v{u+2}", f"v_mul_f32 v{wd+1}, v{u}, v{u+1}"]
        cnt = [0]
        def pk(zr, x, w):
            p = pt[cnt[0] % 4]; cnt[0] += 1
            return [f"v_pk_mul_f32 {vr(p,2)}, {vr(x,2)}, {vr(w,2)} op_sel:[0,0] op_sel_hi:[1,0]",
                    f"v_pk_fma_f32 {vr(zr,2)}, {vr(x,2)}, {vr(w,2)}, {vr(p,2)} op_sel:[1,1,0] op_sel_hi:[0,1,1] neg_lo:[1,0,0]"]
        wc = [0]
        def put(row, zr, neg):
            d = cw + wc[0] % 8; wc[0] += 1
            return [cvt(d, zr, zr + 1, False, neg), f"ds_write_b32 v{aFW}, v{d} offset:{272*row}"]
        hsteps = [(i, i - 1, w1) for i in range(1, 8)] + [(8, 0, w256), (9, 2, w256), (10, 4, w256), (11, 6, w256), (12, 8, w256), (13, 10, w256),
                  (14, 12, w256), (15, 13, w256), (16, 14, w256), (17, 16, w256), (18, 17, w256), (19, 18, w256), (20, 19, w256)]
        seq = [[f"v_mov_b32 v{cw+7}, 0x3f80", f"ds_write_b32 v{aFW}, v{cw+7} offset:{272*21}"] + put(22, w8, False) + put(0, H[0], True)]
        prev = w8
        for m in range(2, 32):
            cur = E[m % 4]
            o = pk(cur, prev, w8) + put(21 + m, cur, False); prev = cur
            if m - 2 < len(hsteps):
                d, sdx, w = hsteps[m - 2]
                o += pk(H[d], H[sdx], w) + put(d, H[d], True)
            seq.append(o)
        for o in seq: blk += o
        P.sched(blk, "Kfac")
        self.gbar(0, 2, vP, VONE, vt)
        self.stamp()
        R.release(m0)
        UG = [R.get(4, 4), R.get(4, 4)]; uc0, uc1, ut0, ut1 = [R.get() for _ in range(4)]
        m1 = R.mark()
        FA = [[R.get(4) for _ in range(8)] for _ in range(2)]; FB = [R.get(4) for _ in range(8)]
        KD = [R.get(4), R.get(4)]; kd = R.get(4)
        blk = []
        for k in range(8):
            off = (k // 4) * FACW + (k % 4) * 64
            blk += [f"ds_read_b128 {vr(FB[k],4)}, v{aFB} offset:{off}", f"ds_read_b128 {vr(FA[0][k],4)}, v{aFA0} offset:{off}",
                    f"ds_read_b128 {vr(FA[1][k],4)}, v{aFA1} offset:{off}"]
        for k in range(8):
            for rt in range(2): blk.append(mf(KD[rt], FA[rt][k], FB[k], KD[rt] if k else None))
        blk += [cvt(kd, KD[0], KD[0] + 1), cvt(kd + 1, KD[0] + 2, KD[0] + 3), cvt(kd + 2, KD[1], KD[1] + 1),
                f"ds_write_b32 v{aK0}, v{kd}", f"ds_write_b32 v{aK1}, v{kd+1}",
                f"ds_write_b16 v{aK2}, v{kd+2}", f"ds_write_b16_d16_hi v{aK2}, v{kd+2} offset:256"]
        P.sched(blk, "Kmfma")
        uloads = f"""global_load_dwordx4 {vr(UG[0],4)}, v{aUG}, s[42:43] sc1
        global_load_dwordx4 {vr(UG[1],4)}, v{aUG}, s[42:43] offset:128 sc1
        global_load_dword v{uc0}, v{aUGc}, s[42:43] sc1
        global_load_dword v{uc1}, v{aUGc}, s[42:43] offset:32 sc1"""
        P(uloads)
        self.gbar(4, 2, vP, VONE, vt)
        R.release(m1)
        e = R.get(19); CP = [R.get(8, 4) for _ in range(4)]
        blk = ["s_mov_b32 s47, 0x05040100"]
        blk += [f"ds_read_u16 v{e+y}, v{aE+y}" for y in range(19)]
        for s in range(4):
            for k in range(8): blk.append(f"v_perm_b32 v{CP[s]+k}, v{e+s+2*k+1}, v{e+s+2*k}, s47")
            blk += [f"ds_write_b128 v{aKRw}, {vr(CP[s],4)} offset:{4160*s}", f"ds_write_b128 v{aKRw}, {vr(CP[s]+4,4)} offset:{4160*s+16}"]
        P.sched(blk, "Kexp")
        self.stamp()
        self.validate(uloads, self.chk16(UG[0], UG[1], uc0, uc1, ut0, ut1))
        self.stamp()
        P(f"""ds_write_b128 v{aUU}, {vr(UG[0],4)}
        ds_write_b128 v{aUU}, {vr(UG[1],4)} offset:4576""")
        self.gbar(CNT + 16, 4, VZ, VONE, vt)
        R.release(m0)
        ACC = [R.get(4) for _ in range(8)]
        KA = [[R.get(4) for _ in range(8)] for _ in range(2)]; UB = [[R.get(4) for _ in range(8)] for _ in range(2)]
        blk = []
        for rl in range(4):
            b = rl % 2
            for k in range(8):
                offK = 64 * (59 - 8 * k - rl); offU = 64 * (8 * k - rl + 3)
                blk += [f"ds_read_b64 {vr(KA[b][k],2)}, v{aKA} offset:{offK}", f"ds_read_b64 {vr(KA[b][k]+2,2)}, v{aKA} offset:{offK+8}",
                        f"ds_read_b128 {vr(UB[b][k],4)}, v{aUB} offset:{offU}"]
            for nb in range(8):
                for ch in range(nb + 1):
                    blk.append(mf(ACC[nb], KA[b][ch], UB[b][nb - ch], None if (rl == 0 and ch == 0) else ACC[nb]))
        P.sched(blk, "conv")
        self.stamp()
        RD = [KA[0][k] for k in range(4)]; YO = [KA[0][4], KA[0][5]]; cs = KA[0][6]
        lodd, ljoin = self.L("rodd"), self.L("rjoin")
        P(f"s_cmp_eq_u32 s45, 1\ns_cbranch_scc1 {lodd}")
        for h in range(2):
            P.cond = f"hw:{h}"
            for k in range(4): P(f"ds_write_b128 v{aRw}, {vr(ACC[4*(1-h)+k],4)} offset:{1024*k}")
            if h == 0:
                P(f"s_branch {ljoin}"); P.cond = None; P(f"{lodd}:")
        P.cond = None
        P(f"{ljoin}:")
        self.gbar(8, 2, vP, VONE, vt)
        for k in range(4): P(f"ds_read_b128 {vr(RD[k],4)}, v{aRr} offset:{1024*k}")
        lodd, ljoin = self.L("sodd"), self.L("sjoin")
        P(f"s_cmp_eq_u32 s45, 1\ns_cbranch_scc1 {lodd}")
        for h in range(2):
            P.cond = f"hs:{h}"
            for k in range(4):
                for r in range(4): P(f"v_add_f32 v{RD[k]+r}, v{RD[k]+r}, v{ACC[4*h+k]+r}")
            if h == 0:
                P(f"s_branch {ljoin}"); P.cond = None; P(f"{lodd}:")
        P.cond = None
        P(f"{ljoin}:")
        blk = []
        for kp in range(2):
            for k in range(2):
                blk += [cvt(YO[kp] + 2*k, RD[2*kp + k], RD[2*kp + k] + 1), cvt(YO[kp] + 2*k + 1, RD[2*kp + k] + 2, RD[2*kp + k] + 3)]
            blk += [f"v_permlane16_swap_b32 v{YO[kp]}, v{YO[kp]+2}", f"v_permlane16_swap_b32 v{YO[kp]+1}, v{YO[kp]+3}",
                    f"global_store_dwordx4 v{aYst}, {vr(YO[kp],4)}, s[42:43] offset:{1024*kp} sc1"]
        for kp in range(2): blk += self.csum(YO[kp], cs + kp) + [f"global_store_dword v{aYc}, v{cs+kp}, s[42:43] offset:{256*kp} sc1"]
        P.sched(blk, "Yout")
        self.stamp()
        R.release(m0)
        TS_ = R.get(16); UR = [R.get(4, 4), R.get(4, 4)]; Df = R.get(8); t = R.get(16)
        blk = [f"ds_read_b128 {vr(UR[0],4)}, v{aUR0}", f"ds_read_b128 {vr(UR[1],4)}, v{aUR1} offset:1024",
               f"v_add_u32 v{aYw1}, 16384, v{aOA}"]
        for d in range(4): blk += [f"v_lshlrev_b32 v{Df+2*d}, 16, v{DK+d}", f"v_and_b32 v{Df+2*d+1}, 0xffff0000, v{DK+d}"]
        for it in range(2):
            for d in range(4):
                a, b = t + 8*it + 2*d, t + 8*it + 2*d + 1
                blk += [f"v_lshlrev_b32 v{a}, 16, v{UR[it]+d}", f"v_and_b32 v{b}, 0xffff0000, v{UR[it]+d}",
                        f"v_mul_f32 v{a}, v{a}, v{Df+2*d}", f"v_mul_f32 v{b}, v{b}, v{Df+2*d+1}", cvt(UR[it] + d, a, b),
                        f"v_lshlrev_b32 v{TS_+8*it+2*d}, 16, v{UR[it]+d}", f"v_and_b32 v{TS_+8*it+2*d+1}, 0xffff0000, v{UR[it]+d}"]
        P.sched(blk, "skip")
        YG = [R.get(4, 4), R.get(4, 4)]; yc0, yc1, yt0, yt1 = [R.get() for _ in range(4)]
        yloads = f"""global_load_dwordx4 {vr(YG[0],4)}, v{aYG}, s[42:43] offset:-2048 sc1
        global_load_dwordx4 {vr(YG[1],4)}, v{aYG}, s[42:43] offset:2048 sc1
        global_load_dword v{yc0}, v{aYGc}, s[42:43] sc1
        global_load_dword v{yc1}, v{aYGc}, s[42:43] offset:1024 sc1"""
        self.stamp()
        P(yloads)
        self.validate(yloads, self.chk16(YG[0], YG[1], yc0, yc1, yt0, yt1))
        self.stamp()
        P(f"""ds_write_b128 v{aYw0}, {vr(YG[0],4)}
        ds_write_b128 v{aYw0}, {vr(YG[1],4)} offset:128""")
        self.gbar(CNT + 20, 4, VZ, VONE, vt)
        blk = []
        for it in range(2):
            for hh in range(2): blk.append(f"ds_read_b64_tr_b16 {vr(UR[it]+2*hh,2)}, v{(aYR0, aYR1)[it]} offset:{512*hh}")
        for it in range(2):
            for d in range(4):
                a, b = t + 8*it + 2*d, t + 8*it + 2*d + 1
                blk += [f"v_lshlrev_b32 v{a}, 16, v{UR[it]+d}", f"v_and_b32 v{b}, 0xffff0000, v{UR[it]+d}",
                        f"v_add_f32 v{a}, v{a}, v{TS_+8*it+2*d}", f"v_add_f32 v{b}, v{b}, v{TS_+8*it+2*d+1}", cvt(YG[it] + d, a, b)]
            blk.append(f"global_store_dwordx4 v{(aOA, aYw1)[it]}, {vr(YG[it],4)}, s[40:41]")
        P.sched(blk, "A3")
        self.stamp()
        self.dump_stamps(t)
        P("L_end:\ns_endpgm")
        self.vmaxA = R.hi

    def build(self):
        self.prologue(); self.role_B(); self.role_A()
        body = self.P.text()
        nv = max(self.vmaxA, self.vmaxB)
        ref = open("cdna_kernels/" + NAME + ".s.ref").read().split("\n")
        head = [l for l in ref if l.startswith(";") and "@launch" not in l and "Override" not in l and "grid=ceil" not in l]
        s = "\n".join(head) + f"\n; @launch grid=(256,1,1) block=(512,1,1) lds={LDS_BYTES}\n"
        s += f""".amdgcn_target "amdgcn-amd-amdhsa--gfx950"
.text
.globl {NAME}_kernel
.p2align 8
.type {NAME}_kernel,@function
{NAME}_kernel:
{body}.section .rodata,"a"
.p2align 6
.amdhsa_kernel {NAME}_kernel
  .amdhsa_next_free_vgpr {nv}
  .amdhsa_next_free_sgpr 102
  .amdhsa_accum_offset {(nv + 3) // 4 * 4}
  .amdhsa_group_segment_fixed_size 0
  .amdhsa_kernarg_size 120
  .amdhsa_user_sgpr_count 2
  .amdhsa_user_sgpr_kernarg_segment_ptr 1
  .amdhsa_system_sgpr_workgroup_id_x 1
.end_amdhsa_kernel
"""
        return s

if __name__ == "__main__":
    stamps = "--stamps" in sys.argv
    out = [a for a in sys.argv[1:] if not a.startswith("--")]
    g = Gen(stamps, "--diag" in sys.argv, "--strict" in sys.argv, "--nonce" in sys.argv); s = g.build()
    open(out[0] if out else "cdna_kernels/" + NAME + ".s", "w").write(s)
    print("vgpr B/A", g.vmaxB, g.vmaxA, "lds", LDS_BYTES, "lines", s.count("\n"))
    for n, k, t in g.P.est: print(f"  {n}: {k} instrs, est {t} cyc")
```

```python
import numpy as np

def bf16_bits(x):
    u = np.ascontiguousarray(x, dtype=np.float32).view(np.uint32).astype(np.uint64)
    r = (u + 0x7FFF + ((u >> 16) & 1)) >> 16
    return r.astype(np.uint16)
def from_bits(b):
    return (b.astype(np.uint32) << 16).view(np.float32)
def rb(x):
    return from_bits(bf16_bits(x))
def rbc(z):
    return rb(z.real) + 1j * rb(z.imag)

def make_inputs(seed=0):
    g = np.random.default_rng(seed)
    rn = lambda *s: rb(g.standard_normal(s).astype(np.float32))
    D, N, L = 512, 128, 2048
    inp = {}
    inp["u"] = rb(rn(L, D) * np.float32(0.05))
    inp["A_re"] = -rb(np.exp(rb(rn(D, N) * np.float32(6.4))))
    inp["A_im"] = rb(np.float32(np.pi) * rb(rn(D, N) * np.float32(0.05)))
    for k in ("B_re", "B_im", "C_re", "C_im"): inp[k] = rb(rn(D, N) * np.float32(0.1))
    inp["log_dt"] = rb(rb(rb(rn(D) * np.float32(0.05)) * np.float32(0.5)) - np.float32(4.0))
    inp["Dskip"] = rb(rn(D) * np.float32(0.05))
    inp["x"] = rb(rn(L, D) * np.float32(0.05))
    inp["w_r"] = rb(rb(rn(L, 257) * np.float32(1.6)) * np.float32(0.02))
    inp["w_i"] = rb(rb(rn(L, 257) * np.float32(1.6)) * np.float32(0.02))
    return inp

def vmap():
    return rb(np.arange(2048, dtype=np.float32)).astype(np.int64)

def ref_K(inp):
    dt = rb(np.exp(inp["log_dt"].astype(np.float64)).astype(np.float32)).astype(np.float64)[:, None]
    a = dt * (inp["A_re"].astype(np.float64) + 1j * inp["A_im"])
    G = (inp["C_re"] + 1j * inp["C_im"].astype(np.float64)) * (dt * (inp["B_re"] + 1j * inp["B_im"].astype(np.float64)))
    vs = np.unique(vmap())
    Kv = np.zeros((512, 2049))
    for d in range(512):
        Kv[d, vs] = (G[d][:, None] * np.exp(a[d][:, None] * vs[None, :])).sum(0).real
    return Kv[:, vmap()], a, G

def ref_A(inp, K=None):
    if K is None: K = ref_K(inp)[0]
    U = np.fft.rfft(inp["u"].T.astype(np.float64), 4096, axis=1)
    y = np.fft.irfft(U * np.fft.rfft(K, 4096, axis=1), 4096, axis=1)[:, :2048]
    yb = rb(y.T.astype(np.float32))
    return rb(yb + rb(inp["u"] * inp["Dskip"][None, :])), yb

def ref_B(inp):
    X = np.fft.rfft2(inp["x"].astype(np.float64))
    return rb(np.fft.irfft2(X * (inp["w_r"] + 1j * inp["w_i"].astype(np.float64)), s=(2048, 512)).astype(np.float32))

ROWS = list(range(8)) + [256, 258, 260, 262, 512, 516, 768, 772, 1024, 1280, 1536, 1792, 2048]
def model_K(inp):
    _, a, G = None, None, None
    dt = rb(np.exp(inp["log_dt"].astype(np.float64)).astype(np.float32)).astype(np.float64)[:, None]
    a = dt * (inp["A_re"].astype(np.float64) + 1j * inp["A_im"])
    G = (inp["C_re"] + 1j * inp["C_im"].astype(np.float64)) * (dt * (inp["B_re"] + 1j * inp["B_im"].astype(np.float64)))
    Kv = np.zeros((512, 2304), np.float32)
    for d in range(512):
        H = rbc(G[d][None, :] * np.exp(a[d][None, :] * np.array(ROWS)[:, None]))
        E = rbc(np.exp(a[d][None, :] * (8 * np.arange(32))[:, None]))
        T = H.real @ E.real.T - H.imag @ E.imag.T
        for i, r in enumerate(ROWS): Kv[d, r + 8 * np.arange(32)] = T[i]
    return rb(Kv[:, vmap()])

def w(n, N): return np.exp(-2j * np.pi * np.asarray(n) / N)

def model_B(inp):
    x = inp["x"].astype(np.float64)
    xr = x.reshape(8, 256, 64, 8)
    F = rbc(w(np.outer(np.arange(64), np.arange(64)), 64))
    D1 = np.einsum("jsac,af->sjcf", xr, F)
    D1 = rbc(D1 * w(np.outer(np.arange(8), np.arange(64)), 512)[None, None])
    ph = (np.arange(8)[:, None, None, None] * np.arange(8)[None, None, :, None] + np.arange(8)[None, :, None, None] * np.arange(5)[None, None, None, :])
    M = rbc(w(ph, 8))
    U = rbc(np.einsum("sjcf,jckb->skbf", D1, M))
    T1 = np.concatenate([U[:, :, :4].reshape(256, 8, 256), U[:, :, 4, :1]], axis=2)
    W = inp["w_r"].astype(np.float64) + 1j * inp["w_i"]
    W = W.copy(); W[:, 0] *= 0.5; W[:, 256] *= 0.5
    V = np.zeros((256, 8, 257), complex)
    i16 = np.arange(16)
    for k1 in range(8):
        t = T1[:, k1, :].reshape(16, 16, 257)
        M1 = rbc(w(np.outer(i16, 8 * i16 + k1), 128))
        tw = w(np.outer(i16, 8 * i16 + k1), 2048)
        M2 = rbc(w(np.outer(i16, i16), 16))
        s1 = rbc(np.einsum("abf,ak->bkf", t, M1) * tw[:, :, None])
        X = np.einsum("bkf,bm->kmf", s1, M2)
        Wk = W[k1::8].reshape(16, 16, 257).transpose(1, 0, 2)
        Y = rbc(X * Wk)
        s2 = rbc(np.einsum("kmf,mb->kbf", Y, M2.conj()) * (tw.conj().T * 2.0 ** -19)[:, :, None])
        v = rbc(np.einsum("kbf,ak->abf", s2, M1.conj()))
        V[:, k1, :] = v.reshape(256, 257)
    Vr = V[:, :, :256].reshape(256, 8, 4, 64)
    D = np.einsum("skbf,jckb->sjcf", Vr, M[:, :, :, :4].conj())
    D = rbc(D * np.exp(2j * np.pi * np.outer(np.arange(8) - 4, np.arange(64)) / 512)[None, None])
    ang = 2 * np.pi * np.outer(np.arange(64), np.arange(32) + 0.5) / 64
    C = np.einsum("sjcf,fa->sjca", D.real, rb(np.cos(ang)).astype(np.float64))
    S = np.einsum("sjcf,fa->sjca", D.imag, rb(np.sin(ang)).astype(np.float64))
    nyq = np.einsum("sk,jck->sjc", V[:, :, 256], M[:, :, :, 4].conj()).real
    C = C + nyq[..., None]
    y = np.concatenate([C - S, (C + S)[..., ::-1]], axis=3)
    return rb(y.transpose(1, 0, 3, 2).reshape(2048, 512).astype(np.float32)), T1, V

if __name__ == "__main__":
    inp = make_inputs(0)
    rB = ref_B(inp); mB, _, _ = model_B(inp)
    print("B: absmax ref", np.abs(rB).max(), "maxerr", np.abs(rB - mB).max(), "rms err/rms", np.sqrt(((rB - mB) ** 2).mean() / (rB ** 2).mean()))
    K = ref_K(inp)[0]; Km = model_K(inp)
    print("K: rms", np.sqrt((K ** 2).mean()), "rel rms err", np.sqrt(((K - Km) ** 2).mean() / (K ** 2).mean()))
    rA, _ = ref_A(inp, K); mA, _ = ref_A(inp, Km.astype(np.float64))
    print("A: absmax ref", np.abs(rA).max(), "maxerr", np.abs(rA - mA).max(), "rms err/rms", np.sqrt(((rA - mA) ** 2).mean() / (rA ** 2).mean()))
```

```python
import sys, struct, math
import numpy as np
from asmlib import Prog, Regs, vr
from model import bf16_bits

NAME = "concat_heads__ssm_conv_s4__spectral_gfnet__prompt"
def fl(x): return "0x%08x" % struct.unpack("<I", struct.pack("<f", x))[0]

TS = VS = 10368
US = YS = 10240
T1_OFF = 0
V_OFF = T1_OFF + 256 * TS
UT_OFF = V_OFF + 256 * VS
YT_OFF = UT_OFF + 256 * US
VN_OFF = YT_OFF + 256 * YS
EP_OFF = VN_OFF + 16384
ST_OFF = EP_OFF + 4096
CNT = 0
UTL = 128
YTL = UTL + 8192
XT = YTL + 8192
WL = XT + 8 * 1088
TI = WL + 8192
VO = TI + 2 * 4160
VI = VO + 8 * 1040
NL = VI + 8192
TAB = NL + 1024
KC = TAB + 28672
UU = KC + 2 * 1600
FAC = UU + 2 * 4576
FACW = 53 * 272
LDS_END = FAC + 4 * FACW
KRO, REDO = 0, 4 * 4160
LDS_BYTES = (LDS_END + 255) // 256 * 256
assert LDS_BYTES <= 163840 and REDO + 8192 <= 2 * FACW
MAXPOLL = 1 << 16
SGN = "s49"
WS, OUT = "s[52:55]", "s[56:59]"

L_ = np.arange(64); N_ = L_ & 15; G_ = L_ >> 4
def f32(x): return np.asarray(x, np.float32).view(np.uint32).astype(np.int64)
def pk(a, b): return bf16_bits(np.asarray(a, np.float32)).astype(np.int64) | (bf16_bits(np.asarray(b, np.float32)).astype(np.int64) << 16)
def cs_(ang): return np.cos(2 * np.pi * ang), np.sin(2 * np.pi * ang)

def table_B(w):
    l, n, g = L_, N_, G_; tau = 64 * w + l; r = n >> 2; c = n & 3; hf = l & 1
    T = {}
    T["aXT"] = XT + (c >> 1) * 1088 + (8 * g + r) * 16 + (c & 1) * 8
    T["aT1"] = (n >> 2) * 1024 + (n & 3) * 64 + g * 16 + w * 256
    T["aT1c"] = 8192 + w * 512 + 16 * n + 4 * g
    T["aW"] = 4112 * tau
    p = tau >> 1; a = p >> 4; z = (a & 1) | (((a >> 2) & 1) << 1)
    T["aG"] = p * TS + hf * 16
    T["aGc"] = p * TS + hf * 4 + 8192
    T["aGl"] = TI + hf * 4160 + a * 256 + (((p & 15) ^ z) << 4)
    fb = (p >> 3) & 3; k1l = p >> 5; z = (fb & 1) | ((k1l & 1) << 1)
    T["aHl"] = VI + (4 * k1l + fb) * 256 + (((tau & 15) ^ (z << 2)) << 4)
    z = (r >> 1) | ((g & 1) << 1); base = g * 1024 + (r >> 1) * 256 + 8 * (r & 1)
    for m in range(4): T[f"aTI{m}"] = TI + (w >> 1) * 4160 + base + c * 64 + ((m ^ z) << 4)
    for m in range(4): T[f"aVI{m}"] = VI + base + c * 16 + ((m ^ z) << 6)
    T["aVO"] = VO + (n & 7) * 1040 + 256 * g + 32 * (n >> 3) + 16 * (w >> 1) + 4 * (w & 1)
    T["aVOr"] = VO + w * 1040 + 16 * l
    T["aVst"] = 16 * tau
    T["aVc"] = 8192 + 4 * tau
    rowb = ((2 * w + (g >> 1)) << 19) + 1024
    T["aO1"] = rowb + 16 * (16 * (g & 1) + n)
    T["aO2"] = rowb + 16 * (63 - 16 * (g & 1) - n)
    T["aWl"] = WL + 16 * tau
    T["aWr"] = WL + 4 * w + 1024 * g + 16 * n
    T["aVN"] = (g & 1) * 8192
    T["aNT"] = l * TS
    T["aNW"] = 4112 * (n + 64 * g)
    T["aTab"] = TAB + 16 * l
    j = 2 * w + (n >> 3); cb = n & 7
    for ks in range(2):
        cc, ss = zip(*[cs_((j * (4 * ks + g) + cb * m) / 8) for m in range(4)])
        for m in range(4): T[f"Pre{ks}_{m}"] = pk(cc[m], -ss[m])
        for m in range(4): T[f"Pim{ks}_{m}"] = pk(ss[m], cc[m])
    sg = np.where(g < 2, 1.0 - 2 * (n & 1), 0.0)
    for m in range(4):
        cc, ss = cs_(j * (4 * g + m) / 8); T[f"NQ{m}"] = pk(sg * cc, -sg * ss)
    return T

def table_K1(k1):
    n, g = N_, G_; T = []
    q = lambda f: [cs_(f(m)) for m in range(4)]
    A = q(lambda m: (4 * g + m) * (8 * n + k1) / 128)
    T += [pk(c, s) for c, s in A] + [pk(-s, c) for c, s in A]
    A = q(lambda m: n * (8 * (4 * g + m) + k1) / 128)
    T += [pk(c, -s) for c, s in A] + [pk(s, c) for c, s in A]
    A = q(lambda m: (4 * g + m) * (8 * n + k1) / 2048)
    T += [f32(c) for c, s in A] + [f32(s) for c, s in A]
    A = q(lambda m: n * (8 * (4 * g + m) + k1) / 2048)
    T += [f32(c * 2.0 ** -19) for c, s in A] + [f32(s * 2.0 ** -19) for c, s in A]
    return T

def table_S():
    n, g = N_, G_; T = []
    A = [cs_((4 * g + m) * n / 16) for m in range(4)]
    T += [pk(c, s) for c, s in A] + [pk(-s, c) for c, s in A] + [pk(c, -s) for c, s in A] + [pk(s, c) for c, s in A]
    for fn in (0, 1):
        for kk in range(2):
            for ct in range(2):
                v = [cs_((32 * kk + 16 * (jj >> 2) + 4 * g + (jj & 3)) * (16 * ct + n + 0.5) / 64)[fn] for jj in range(8)]
                T += [pk(v[2 * d], v[2 * d + 1]) for d in range(4)]
    for fn in (0, 1):
        for t in range(4):
            T += [f32(cs_((16 * t + 4 * g + r) * ((n & 7) - 4) / 512)[fn]) for r in range(4)]
    return T

def table_A(a):
    l, n, g = L_, N_, G_; chs, h = a >> 1, a & 1; tau = 64 * a + l
    c3 = n & 3; r = n >> 2; g0 = g & 1; g1 = g >> 1; e3 = 4 * g0 + c3; oc = 4 * g1 + r
    T = {}
    base = (4 * g1 + c3) * 1024 + r * 128 + g0 * 8; sg = 2 * c3 + (n >> 3)
    T["aTR0"] = base + (((2 * a) ^ sg) << 4)
    T["aTR1"] = base + (((2 * a + 1) ^ sg) << 4)
    T["aUst"] = (16 * a + e3) * 128 + oc * 16
    T["aUc"] = 8192 + (16 * a + e3) * 32 + oc * 4
    fch = FAC + chs * 2 * FACW
    T["aFW"] = FAC + a * FACW + 4 * l
    T["aFA0"] = fch + 272 * n + 16 * g
    T["aFA1"] = fch + 272 * np.where(c3 == 1, 20, 16 + r) + 16 * g
    T["aFB"] = fch + 272 * (21 + 16 * h + n) + 16 * g
    kc = KC + chs * 1600 + 16; m = 16 * h + n
    T["aK0"] = kc + np.select([g < 2, g == 2], [16 * m + 8 * g, 512 + 8 * m], 768 + 4 * m)
    T["aK1"] = T["aK0"] + np.where(g == 3, 128, 4)
    T["aK2"] = kc + 1024 + 64 * g + 2 * m
    T["aKRw"] = fch + KRO + (64 * h + l) * 32
    for y in range(19):
        j = 2047 - 16 * (64 * h + l) - y
        idx = np.where(j < 256, j, bf16_bits(np.maximum(j, 1).astype(np.float32)).astype(np.int64) - 0x4300 + 128)
        T[f"aE{y}"] = kc + 2 * idx
    T["aKZ"] = fch + KRO + 4096 + ((l >> 1) & 3) * 4160 + (l & 1) * 16
    T["aUG"] = (tau >> 3) * US + (tau & 7) * 16
    T["aUGc"] = (tau >> 3) * US + (tau & 7) * 4 + 8192
    T["aUU"] = UU + 480 + 16 * tau
    T["aKA"] = fch + KRO + (3 ^ c3) * 4160 + 24 - 8 * r + 16 * g + 256 - 256 * h
    T["aUB"] = UU + chs * 4576 + 32 * n + 16 * g + 256 - 256 * h
    T["aRw"] = fch + REDO + h * 4096 + 16 * l
    T["aRr"] = fch + REDO + (1 - h) * 4096 + 16 * l
    gam = 128 * a + 32 * g0 + 2 * n + g1
    T["aYst"] = 16 * gam
    T["aYc"] = 8192 + 4 * gam
    pq = tau >> 3; f = 2 * ((pq >> 2) & 3) + (pq & 1)
    T["aYw"] = YTL + pq * 256 + (((tau & 7) ^ f) << 4)
    for it in range(2):
        row = 16 * a + 8 * it + e3; s = 2 * ((row >> 3) & 3) + ((row >> 1) & 1)
        T[f"aUR{it}"] = UTL + row * 128 + ((oc ^ s) << 4)
    T["aOA"] = (16 * a + e3) * 2048 + oc * 16
    T["aDK"] = oc * 16
    T["pad0"] = 0 * l; T["pad1"] = 0 * l
    return T

def groups(regs):
    assert len(regs) % 4 == 0
    return np.stack([np.stack(regs[i:i + 4], axis=1) for i in range(0, len(regs), 4)]).astype(np.int64) & 0xffffffff

NGB = len(table_B(0)) // 4; NGA = len(table_A(0)) // 4
TB_OFF = 0
TA_OFF = TB_OFF + 4 * NGB * 1024
TK_OFF = TA_OFF + 4 * NGA * 1024
TSH_OFF = TK_OFF + 8 * 8192
def table_bytes():
    parts = [groups(list(table_B(w).values())) for w in range(4)] + [groups(list(table_A(a).values())) for a in range(4)]
    parts += [groups(table_K1(k)) for k in range(8)] + [groups(table_S())]
    return np.concatenate([p.reshape(-1) for p in parts]).astype(np.uint32)

class Gen:
    def __init__(self, stamps=False, nonce=False, opt=None):
        self.nonce = nonce; self.opt = opt or {}
        self.P = Prog(); self.stamps = stamps; self.nst = 0; self.lab = 0
    def L(self, base):
        self.lab += 1; return f"L_{base}_{self.lab}"
    def stamp(self):
        if self.stamps:
            self.P(f"s_memrealtime s[{68+2*self.nst}:{69+2*self.nst}]"); self.nst += 1
    def dump_stamps(self, v):
        if not self.stamps: return
        P = self.P
        P(f"""s_waitcnt lgkmcnt(0)
        s_lshl_b32 s7, s2, 3
        s_add_u32 s7, s7, s3
        s_lshl_b32 s7, s7, 6
        s_add_u32 s7, s7, {ST_OFF}
        v_mov_b32 v{v}, s7""")
        for i in range(self.nst):
            P(f"v_mov_b32 v{v+1}, s{68+2*i}\nbuffer_store_dword v{v+1}, v{v}, {WS}, 0 offen offset:{4*i}\ns_nop 1")
    def gbar(self, off, target, vz, vone, vt):
        l = self.L("gb"); d = self.L("gbd")
        self.P(f"""s_mov_b64 exec, 1
        ds_add_u32 v{vz}, v{vone} offset:{off}
        s_mov_b64 exec, -1
        s_mov_b32 s48, {1 << 22}
        {l}:
        ds_read_b32 v{vt}, v{vz} offset:{off}
        s_sub_u32 s48, s48, 1
        s_cbranch_scc1 {d}
        s_waitcnt lgkmcnt(0)
        v_readfirstlane_b32 s7, v{vt}
        s_cmp_lt_u32 s7, {target}
        s_cbranch_scc1 {l}
        {d}:
        s_waitcnt lgkmcnt(0)""")
    def validate(self, loads, checks):
        l = self.L("chk"); d = self.L("ok")
        self.P(f"""s_mov_b32 s48, {MAXPOLL}
        {l}:
        s_waitcnt vmcnt(0)""")
        self.P(checks)
        self.P(f"""s_and_b64 exec, s[10:11], s[10:11]
        s_cbranch_scc0 {d}
        s_sub_u32 s48, s48, 1
        s_cbranch_scc1 {d}""")
        self.P(loads)
        self.P(f"""s_branch {l}
        {d}:
        s_mov_b64 exec, -1
        s_waitcnt vmcnt(0)""")
    @staticmethod
    def csum(d, t):
        return [f"v_lshl_add_u32 v{t}, v{d+2}, 5, v{d+3}", f"v_lshl_add_u32 v{t}, v{d+1}, 9, v{t}", f"v_xad_u32 v{t}, v{d}, s5, v{t}"]
    def chk16(self, d0, d1, c0, c1, t0, t1):
        a, b = self.csum(d0, t0), self.csum(d1, t1)
        return "\n".join(x for p in zip(a, b) for x in p) + f"""
        v_cmp_ne_u32 vcc, v{t0}, v{c0}
        v_cmp_ne_u32 s[10:11], v{t1}, v{c1}
        s_or_b64 s[10:11], s[10:11], vcc"""
    @staticmethod
    def chk8(d, t):
        s = "".join(f"v_add_u32 v{t+e}, s5, v{d+2*e}\n" for e in range(4))
        s += f"v_cmp_ne_u32 s[10:11], v{t}, v{d+1}\n"
        for e in range(1, 4): s += f"v_cmp_ne_u32 vcc, v{t+e}, v{d+2*e+1}\ns_or_b64 s[10:11], s[10:11], vcc\n"
        return s
    @staticmethod
    def cvt(d, a, b, na=False, nb=False):
        return f"v_cvt_pk_bf16_f32 v{d}, {'-' if na else ''}v{a}, {'-' if nb else ''}v{b}"
    @staticmethod
    def cmul(dr, di, c, s, outr, outi, t1, t2, conj):
        if conj:
            return [f"v_mul_f32 v{t1}, v{di}, v{s}", f"v_mul_f32 v{t2}, v{di}, v{c}",
                    f"v_fma_f32 v{outr}, v{dr}, v{c}, v{t1}", f"v_fma_f32 v{outi}, -v{dr}, v{s}, v{t2}"]
        return [f"v_mul_f32 v{t1}, v{di}, v{s}", f"v_mul_f32 v{t2}, v{di}, v{c}",
                f"v_fma_f32 v{outr}, v{dr}, v{c}, -v{t1}", f"v_fma_f32 v{outi}, v{dr}, v{s}, v{t2}"]
    @staticmethod
    def mf(d, a, b, c=None):
        return f"v_mfma_f32_16x16x32_bf16 {vr(d,4)}, {vr(a,4)}, {vr(b,4)}, {vr(c,4) if c is not None else '0'}"
    @staticmethod
    def pairs(ang0, step, n, cos, sin, tmp):
        o = []
        for i in range(n):
            a = ang0 if i == 0 else tmp + i
            if i: o.append(f"v_add_f32 v{a}, v{ang0 if i == 1 else tmp + i - 1}, v{step}")
            o += [f"v_cos_f32 v{cos+i}, v{a}", f"v_sin_f32 v{sin+i}, v{a}"]
        return o
    def tab_addr(self, va, soff_code):
        self.P(soff_code)
        self.P(f"""s_add_u32 s60, s62, s7
        s_addc_u32 s61, s63, 0
        v_lshl_add_u64 {vr(va,2)}, v[8:9], 0, s[60:61]""")

    def prologue(self):
        P = self.P
        self.stamp()
        P(f"""s_cmp_ge_u32 s2, 256
        s_cbranch_scc1 L_end
        s_load_dwordx16 s[16:31], s[0:1], 0
        s_load_dwordx8 s[32:39], s[0:1], 64
        s_load_dwordx2 s[56:57], s[0:1], 96
        s_load_dwordx4 s[40:43], s[0:1], 104
        s_getpc_b64 s[62:63]
        L_pc:
        s_add_u32 s62, s62, TABLE - L_pc
        s_addc_u32 s63, s63, 0
        v_lshrrev_b32 v4, 6, v0
        v_and_b32 v1, 63, v0
        v_readfirstlane_b32 s3, v4
        v_and_b32 v2, 15, v0
        v_bfe_u32 v3, v0, 4, 2
        v_lshlrev_b32 v8, 4, v1
        v_mov_b32 v9, 0
        s_mov_b32 {SGN}, 0x80008000
        v_mov_b32 v5, 0
        v_mov_b32 v6, 1
        s_and_b32 s8, s2, 7
        s_lshr_b32 s9, s2, 3
        s_mov_b32 s54, 0x10000000
        s_mov_b32 s55, 0x20000
        s_mov_b32 s58, 0x400000
        s_mov_b32 s59, 0x20000
        s_cmp_ge_u32 s3, 4
        s_cbranch_scc1 L_A""")
    def epoch(self):
        self.P("s_mov_b32 s52, s42\ns_mov_b32 s53, s43")
        if self.nonce: return
        self.P(f"""s_add_u32 s14, s42, {EP_OFF}
        s_addc_u32 s15, s43, 0
        s_load_dword s6, s[14:15], 0""")
    def publish_nonce(self, v):
        if not self.nonce: return
        l = self.L("pub")
        self.P(f"""s_or_b32 s7, s2, s3
        s_cmp_eq_u32 s7, 0
        s_cbranch_scc0 {l}""")
        self.P.cond = "pub"
        self.P(f"""s_memrealtime s[64:65]
        s_waitcnt lgkmcnt(0)
        s_mul_i32 s65, s65, 0x9e3779b1
        s_add_u32 s64, s64, s65
        s_mul_i32 s64, s64, 0x85ebca6b
        s_or_b32 s64, s64, 1
        v_mov_b32 v{v}, s64
        s_mov_b64 exec, 1
        global_store_dword v5, v{v}, s[40:41] sc1
        s_mov_b64 exec, -1""")
        self.P.cond = None
        self.P(f"{l}:")
    def fetch_nonce(self, v):
        if not self.nonce: return
        l, lp, d = self.L("get"), self.L("getp"), self.L("getd")
        self.P(f"""s_cmp_eq_u32 s3, 1
        s_cbranch_scc0 {l}""")
        self.P.cond = "get"
        self.P(f"""s_mov_b32 s48, {MAXPOLL}
        {lp}:
        global_load_dword v{v}, v5, s[40:41] sc1
        s_sub_u32 s48, s48, 1
        s_cbranch_scc1 {d}
        s_waitcnt vmcnt(0)
        v_readfirstlane_b32 s7, v{v}
        s_cmp_eq_u32 s7, 0
        s_cbranch_scc1 {lp}
        {d}:
        s_waitcnt vmcnt(0)
        ds_write_b32 v5, v{v} offset:{CNT + 64}""")
        self.P.cond = None
        self.P(f"{l}:")
    def tag(self, v):
        if self.nonce:
            self.P(f"""s_waitcnt lgkmcnt(0)
            s_barrier
            ds_read_b32 v{v}, v5 offset:{CNT + 64}
            s_waitcnt lgkmcnt(0)
            v_readfirstlane_b32 s5, v{v}""")
            return
        self.P("""s_waitcnt lgkmcnt(0)
        s_mul_i32 s5, s6, 0x9e3779b1
        s_add_u32 s5, s5, 0x7f4a7c15
        s_barrier""")

    def role_B(self):
        P = self.P; R = Regs(10, 256); cvt = self.cvt; mf = self.mf
        VZ, VONE, vt = 5, 6, 7
        names = list(table_B(0).keys())
        TBr = R.get(28, 4)
        A = {nm: TBr + i for i, nm in enumerate(names[:28])}
        va = R.get(2); vb = R.get(2)
        P(f"""s_mov_b32 s4, s3
        s_lshl_b32 s7, s2, 10
        s_lshl_b32 s12, s4, 19
        s_add_u32 s7, s7, s12
        v_add_u32 v{vt}, s7, v8
        s_mul_i32 s12, s4, 2176
        s_add_u32 s12, s12, {XT}
        s_mov_b32 m0, s12""")
        self.tab_addr(va, f"s_mul_i32 s7, s4, {NGB*1024}\ns_add_u32 s7, s7, {TB_OFF + 4096}")
        P(f"""s_waitcnt lgkmcnt(0)
        global_load_lds_dwordx4 v{vt}, s[34:35]
        s_add_u32 s12, s12, 1088
        v_add_u32 v{vt}, 0x40000, v{vt}
        s_mov_b32 m0, s12
        s_nop 0
        global_load_lds_dwordx4 v{vt}, s[34:35]""")
        for k in range(7): P(f"global_load_dwordx4 {vr(TBr+4*k,4)}, {vr(va,2)}, off offset:{1024*k-4096}")
        self.epoch()
        self.publish_nonce(vt)
        self.stamp()
        self.tab_addr(vb, f"s_lshl_b32 s7, s8, 13\ns_lshl_b32 s12, s4, 11\ns_add_u32 s7, s7, s12\ns_add_u32 s7, s7, {TK_OFF}")
        P(f"""s_add_u32 s12, s12, {TAB}
        s_mov_b32 m0, s12
        v_lshlrev_b32 v{vt}, 2, v2
        global_load_lds_dwordx4 {vr(vb,2)}, off
        global_load_lds_dwordx4 {vr(vb,2)}, off offset:1024
        ds_write_b32 v{vt}, v{VZ} offset:{CNT}""")
        self.tab_addr(vb, f"s_lshl_b32 s12, s4, 12\ns_add_u32 s7, s12, {TSH_OFF}")
        P(f"s_add_u32 s12, s12, {TAB + 8192}\ns_mov_b32 m0, s12\ns_nop 0")
        for k in range(4): P(f"global_load_lds_dwordx4 {vr(vb,2)}, off offset:{1024*k}")
        self.tab_addr(vb, f"s_lshl_b32 s12, s4, 10\ns_add_u32 s7, s12, {TSH_OFF + 16384}")
        P(f"s_add_u32 s12, s12, {TAB + 8192 + 16384}\ns_mov_b32 m0, s12\ns_nop 0")
        P(f"global_load_lds_dwordx4 {vr(vb,2)}, off")
        S1C = [R.get(4), R.get(4)]; S1S = [R.get(4), R.get(4)]
        TWc = R.get(4); TWs = R.get(4)
        C2 = [[R.get(4) for _ in range(2)] for _ in range(2)]
        S2 = [[R.get(4) for _ in range(2)] for _ in range(2)]
        N2 = [[R.get(4) for _ in range(2)] for _ in range(2)]
        b1_lo, b1_hi = S1C[0], R.mark()
        Wraw = R.get(8, 4); NW = R.get(8, 2); NT = Wraw
        m0 = R.mark()
        t = R.get(40, 2); c_ = R.get(8); s_ = R.get(8); tm = R.get(8)
        fa, ph, ang, gf, fcb, mk, mj, mkj, k1f, fbf, jf, mk1 = [t + i for i in range(12)]
        blk = [f"""s_lshl_b32 s7, s4, 4
        v_add_u32 v{fa}, s7, v2
        v_cvt_f32_u32 v{ph}, v{fa}
        v_mul_f32 v{ph}, {fl(1/64)}, v{ph}
        v_cvt_f32_u32 v{gf}, v3
        v_mul_f32 v{ang}, {fl(8.0)}, v{gf}
        v_mul_f32 v{ang}, v{ang}, v{ph}"""]
        blk += self.pairs(ang, ph, 8, c_, s_, tm)
        blk += [f"v_and_b32 v{mk1}, 1, v{fa}", f"v_mul_lo_u32 v{mk1}, v{mk1}, {SGN}"]
        for d in range(4):
            blk += [cvt(S1C[0] + d, c_ + 2*d, c_ + 2*d + 1), cvt(S1S[0] + d, s_ + 2*d, s_ + 2*d + 1, True, True),
                    f"v_xor_b32 v{S1C[1]+d}, v{S1C[0]+d}, v{mk1}", f"v_xor_b32 v{S1S[1]+d}, v{S1S[0]+d}, v{mk1}"]
        P.sched(blk, "B1c1")
        blk = [f"""v_and_b32 v{fcb}, 1, v3
        v_lshlrev_b32 v{fcb}, 2, v{fcb}
        v_cvt_f32_u32 v{fcb}, v{fcb}
        v_mul_f32 v{t+12}, {fl(1/8)}, v{ph}
        v_mul_f32 v{t+13}, v{fcb}, v{t+12}"""]
        blk += self.pairs(t + 13, t + 12, 4, TWc, TWs, tm)
        blk += [f"""v_lshrrev_b32 v{t+14}, 2, v2
        v_cvt_f32_u32 v{k1f}, v{t+14}
        v_and_b32 v{mk}, 1, v{t+14}
        v_mul_lo_u32 v{mk}, v{mk}, {SGN}
        v_and_b32 v{t+15}, 3, v2
        v_cvt_f32_u32 v{fbf}, v{t+15}
        v_mul_f32 v{fbf}, {fl(1/8)}, v{fbf}
        v_lshrrev_b32 v{t+16}, 1, v3
        v_cvt_f32_u32 v{jf}, v{t+16}
        v_mul_lo_u32 v{mj}, v{t+16}, {SGN}
        v_xor_b32 v{mkj}, v{mk}, v{mj}
        v_mul_f32 v{t+17}, v{jf}, v{k1f}
        v_mul_f32 v{t+17}, {fl(1/8)}, v{t+17}
        v_fma_f32 v{t+17}, v{fcb}, v{fbf}, v{t+17}
        v_mul_f32 v{t+18}, {fl(0.25)}, v{k1f}
        v_add_f32 v{t+18}, v{t+18}, v{t+17}"""]
        blk += self.pairs(t + 17, fbf, 4, c_, s_, t + 20)
        blk += self.pairs(t + 18, fbf, 4, c_ + 4, s_ + 4, t + 24)
        msk = {(0, 1): mj, (1, 0): mk, (1, 1): mkj}
        for d in range(4):
            blk += [cvt(C2[0][0] + d, c_ + 2*d, c_ + 2*d + 1), cvt(S2[0][0] + d, s_ + 2*d, s_ + 2*d + 1),
                    cvt(N2[0][0] + d, s_ + 2*d, s_ + 2*d + 1, True, True)]
            for (kk, ot), m in msk.items():
                for X in (C2, S2, N2): blk.append(f"v_xor_b32 v{X[kk][ot]+d}, v{X[0][0]+d}, v{m}")
        blk += [f"""s_mul_i32 s16, s2, {TS}
        s_add_u32 s17, s16, 4096
        s_mul_i32 s18, s8, 514
        s_lshl_b32 s12, s9, 4
        s_add_u32 s19, s18, s12
        s_lshr_b32 s12, s9, 1
        s_and_b32 s12, s12, 3
        s_lshr_b32 s13, s9, 3
        s_and_b32 s47, s9, 1
        s_lshl_b32 s20, s8, 10
        s_lshl_b32 s44, s12, 8
        s_add_u32 s20, s20, s44
        s_lshl_b32 s44, s13, 6
        s_add_u32 s20, s20, s44
        s_lshl_b32 s44, s47, 5
        s_add_u32 s20, s20, s44
        s_add_u32 s21, s20, {128*TS}
        s_lshl_b32 s22, s12, 9
        s_lshl_b32 s44, s8, 6
        s_add_u32 s22, s22, s44
        s_lshl_b32 s44, s13, 4
        s_add_u32 s22, s22, s44
        s_lshl_b32 s44, s47, 3
        s_add_u32 s22, s22, s44
        s_add_u32 s23, s22, {128*TS}
        s_lshl_b32 s44, s8, 5
        s_add_u32 s44, s44, s9
        s_mul_i32 s24, s44, {VS}
        s_add_u32 s24, s24, {V_OFF}
        s_add_u32 s25, s24, 4096
        s_lshl_b32 s26, s44, 5
        s_add_u32 s26, s26, {V_OFF}
        s_add_u32 s27, s26, {128*VS}
        s_lshl_b32 s28, s44, 3
        s_add_u32 s28, s28, {V_OFF}
        s_add_u32 s29, s28, {128*VS}
        s_lshl_b32 s30, s2, 11
        s_lshl_b32 s31, s2, 3
        s_add_u32 s31, s31, {VN_OFF}
        s_add_u32 s66, s31, 4096
        s_cmp_eq_u32 s9, 31
        s_cselect_b32 s46, s4, 0"""]
        P.sched(blk, "B1c2")
        self.fetch_nonce(vt)
        P("s_waitcnt vmcnt(14)")
        self.tag(vt)
        self.stamp()
        R.release(m0)
        XA = [[R.get(4) for _ in range(2)] for _ in range(4)]
        Dre = [R.get(4) for _ in range(4)]; Dim = [R.get(4) for _ in range(4)]
        DR = [R.get(4), R.get(4)]; DI = [R.get(4), R.get(4)]
        tp = R.get(16)
        Ore = [XA[0][0], XA[0][1]]; Oim = [XA[1][0], XA[1][1]]; OG = [XA[2][0], XA[2][1]]; cs = XA[3][0]
        blk = []
        for tt in range(4):
            for ks in range(2):
                for hh in range(2):
                    blk.append(f"ds_read_b64_tr_b16 {vr(XA[tt][ks]+2*hh,2)}, v{A['aXT']} offset:{tt*2176+ks*512+hh*64}")
        for tt in range(4):
            blk += [mf(Dre[tt], XA[tt][0], S1C[0]), mf(Dim[tt], XA[tt][0], S1S[0]),
                    mf(Dre[tt], XA[tt][1], S1C[1], Dre[tt]), mf(Dim[tt], XA[tt][1], S1S[1], Dim[tt])]
        for tt in range(4):
            for r in range(4):
                q = tp + 4 * (r % 4)
                blk += self.cmul(Dre[tt] + r, Dim[tt] + r, TWc + r, TWs + r, q + 2, q + 3, q, q + 1, True)
                if r % 2 == 1:
                    d = 2 * (tt % 2) + r // 2
                    blk += [cvt(DR[tt // 2] + d, q - 2, q + 2), cvt(DI[tt // 2] + d, q - 1, q + 3)]
        for kk in range(2):
            for ot in range(2):
                blk += [mf(Ore[ot], DR[kk], C2[kk][ot], Ore[ot] if kk else None), mf(Oim[ot], DI[kk], C2[kk][ot], Oim[ot] if kk else None),
                        mf(Ore[ot], DI[kk], S2[kk][ot], Ore[ot]), mf(Oim[ot], DR[kk], N2[kk][ot], Oim[ot])]
        for ot in range(2):
            blk += [cvt(OG[ot], Ore[ot], Ore[ot] + 1), cvt(OG[ot] + 1, Ore[ot] + 2, Ore[ot] + 3),
                    cvt(OG[ot] + 2, Oim[ot], Oim[ot] + 1), cvt(OG[ot] + 3, Oim[ot] + 2, Oim[ot] + 3)]
            blk += [f"buffer_store_dwordx4 {vr(OG[ot],4)}, v{A['aT1']}, {WS}, s{16+ot} offen sc1"]
        for ot in range(2):
            blk += self.csum(OG[ot], cs + ot) + [f"buffer_store_dword v{cs+ot}, v{A['aT1c']}, {WS}, s16 offen offset:{256*ot} sc1"]
        P.sched(blk, "B1")
        self.stamp()
        lsk = self.L("n1")
        P(f"s_cmp_eq_u32 s4, 0\ns_cbranch_scc0 {lsk}")
        P.cond = "w0"
        blk = []
        for kk in range(2):
            for d in range(4): blk.append(f"v_xor_b32 v{DI[kk]+d}, 0x80000000, v{DR[kk]+d}")
        for ot in range(2):
            blk += [mf(Dre[ot], DI[0], C2[0][ot]), mf(Dim[ot], DI[0], N2[0][ot]),
                    mf(Dre[ot], DI[1], C2[1][ot], Dre[ot]), mf(Dim[ot], DI[1], N2[1][ot], Dim[ot])]
            blk += [cvt(tp + 2 * ot, Dre[ot], Dim[ot]), f"v_add_u32 v{tp+2*ot+1}, s5, v{tp+2*ot}"]
        blk += [f"s_add_u32 s7, s16, 10240", f"v_lshlrev_b32 v{tp+4}, 1, v2"]
        P.sched(blk, "B1n")
        P(f"""s_mov_b64 exec, 0x1111
        buffer_store_dwordx2 {vr(tp,2)}, v{tp+4}, {WS}, s7 offen sc1
        buffer_store_dwordx2 {vr(tp+2,2)}, v{tp+4}, {WS}, s7 offen offset:32 sc1
        s_mov_b64 exec, -1""")
        P.cond = None
        P(f"{lsk}:")
        Q = Regs(b1_lo, b1_hi)
        PN = Q.get(20, 4)
        Pre = [PN, PN + 8]; Pim = [PN + 4, PN + 12]; NQ = PN + 16
        CS = Q.get(32, 4)
        COS = [[CS, CS + 4], [CS + 8, CS + 12]]; SIN = [[CS + 16, CS + 20], [CS + 24, CS + 28]]
        Wr = [Q.get(4), Q.get(4)]; Wi = [Q.get(4), Q.get(4)]
        P(f"""s_mov_b64 s[50:51], 4096
        v_add_u32 v{A['aW']}, s19, v{A['aW']}
        v_lshl_add_u64 {vr(va,2)}, {vr(va,2)}, 0, s[50:51]""")
        P(f"""global_load_dwordx4 {vr(Wraw,4)}, v{A['aW']}, s[36:37]
        global_load_dwordx4 {vr(Wraw+4,4)}, v{A['aW']}, s[38:39]""")
        for k in range(5): P(f"global_load_dwordx4 {vr(PN+4*k,4)}, {vr(va,2)}, off offset:{1024*k-1024}")
        lsk = self.L("nw")
        P(f"s_cmp_eq_u32 s46, 3\ns_cbranch_scc0 {lsk}")
        P.cond = "nyq"
        P(f"s_add_u32 s7, s18, 512\nv_add_u32 v{A['aNW']}, s7, v{A['aNW']}")
        for r in range(4):
            P(f"""global_load_ushort v{NW+r}, v{A['aNW']}, s[36:37]
            global_load_ushort v{NW+4+r}, v{A['aNW']}, s[38:39]
            v_add_u32 v{A['aNW']}, {16*4112}, v{A['aNW']}""")
        P.cond = None
        P(f"{lsk}:")
        R.release(m0)
        B2C = R.get(48, 4)
        M1re, M1im, M1cre, M1cim, TFc, TFs, TIc, TIs, M2re, M2im, M2cre, M2cim = [B2C + 4 * k for k in range(12)]
        m1 = R.mark()
        G0, G1 = R.get(4, 4), R.get(4, 4); gc0, gc1, gt0, gt1 = R.get(), R.get(), R.get(), R.get()
        t = R.get(8)
        loads = f"""buffer_load_dwordx4 {vr(G0,4)}, v{A['aG']}, {WS}, s20 offen sc1
        buffer_load_dwordx4 {vr(G1,4)}, v{A['aG']}, {WS}, s21 offen sc1
        buffer_load_dword v{gc0}, v{A['aGc']}, {WS}, s22 offen sc1
        buffer_load_dword v{gc1}, v{A['aGc']}, {WS}, s23 offen sc1"""
        P(f"""ds_write_b128 v{A['aWl']}, {vr(Wraw,4)}
        ds_write_b128 v{A['aWl']}, {vr(Wraw+4,4)} offset:4096""")
        self.stamp()
        P(loads)
        nloads = "".join(f"buffer_load_dwordx2 {vr(NT+2*e,2)}, v{A['aNT']}, {WS}, s{32+e} offen sc1\n" for e in range(4))
        lsk = self.L("nt")
        P(f"s_cmp_eq_u32 s46, 3\ns_cbranch_scc0 {lsk}")
        P.cond = "nyq"
        P(f"""s_lshl_b32 s32, s8, 3
        s_add_u32 s32, s32, {T1_OFF + 10240}
        s_add_u32 s33, s32, {64*TS}
        s_add_u32 s34, s32, {128*TS}
        s_add_u32 s35, s32, {192*TS}
        s_waitcnt lgkmcnt(0)""")
        P(nloads)
        P.cond = None
        P(f"{lsk}:")
        self.gbar(CNT + 0, 4, VZ, VONE, vt)
        blk = []
        for r in range(4):
            blk += [f"ds_read_b32 v{t+r}, v{A['aWr']} offset:{256*r}", f"ds_read_b32 v{t+4+r}, v{A['aWr']} offset:{4096+256*r}"]
        for k in range(12): blk.append(f"ds_read_b128 {vr(B2C+4*k,4)}, v{A['aTab']} offset:{1024*k}")
        for k in range(8): blk.append(f"ds_read_b128 {vr(CS+4*k,4)}, v{A['aTab']} offset:{12288+1024*k}")
        for r in range(4):
            blk += [f"v_lshlrev_b32 v{Wr[0]+r}, 16, v{t+r}", f"v_and_b32 v{Wr[1]+r}, 0xffff0000, v{t+r}",
                    f"v_lshlrev_b32 v{Wi[0]+r}, 16, v{t+4+r}", f"v_and_b32 v{Wi[1]+r}, 0xffff0000, v{t+4+r}"]
        P.sched(blk, "Bw")
        lsk = self.L("dc")
        P(f"s_or_b32 s7, s9, s4\ns_cbranch_scc1 {lsk}")
        P.cond = "dc"
        for r in range(4): P(f"v_mul_f32 v{Wr[0]+r}, 0.5, v{Wr[0]+r}\nv_mul_f32 v{Wi[0]+r}, 0.5, v{Wi[0]+r}")
        P.cond = None
        P(f"{lsk}:")
        self.validate(loads, self.chk16(G0, G1, gc0, gc1, gt0, gt1))
        self.stamp()
        P(f"""ds_write_b128 v{A['aGl']}, {vr(G0,4)}
        ds_write_b128 v{A['aGl']}, {vr(G1,4)} offset:2048""")
        self.gbar(CNT + 4, 4, VZ, VONE, vt)
        if not self.nonce:
            lsk = self.L("ep")
            P(f"s_or_b32 s7, s2, s4\ns_cbranch_scc1 {lsk}")
            P.cond = "ep"
            P(f"""s_add_u32 s7, s6, 1
            v_mov_b32 v{gt0}, s7
            s_mov_b32 s7, {EP_OFF}
            s_mov_b64 exec, 1
            buffer_store_dword v{gt0}, v{VZ}, {WS}, s7 offen sc1
            s_mov_b64 exec, -1""")
            P.cond = None
            P(f"{lsk}:")
        R.release(m1)
        TA = [R.get(4) for _ in range(4)]
        D1re = [R.get(4) for _ in range(4)]; D1im = [R.get(4) for _ in range(4)]
        F = [R.get(4), R.get(4)]
        tq = [R.get(8), R.get(8)]
        Xre = [D1re[0], D1re[1]]; Xim = [D1re[2], D1re[3]]
        def tail(Ff, xr, xi, wr, wi, q, vre, vim):
            o = [mf(xr, M2re, Ff), mf(xi, M2im, Ff)]
            for r in range(4):
                u = q + 4 * (r % 2)
                o += self.cmul(xr + r, xi + r, wr + r, wi + r, u + 2, u + 3, u, u + 1, False) + [cvt(Ff + r, u + 2, u + 3)]
            o += [mf(xr, Ff, M2cre), mf(xi, Ff, M2cim)]
            for r in range(4):
                u = q + 4 * (r % 2)
                o += self.cmul(xr + r, xi + r, TIc + r, TIs + r, u + 2, u + 3, u, u + 1, False) + [cvt(Ff + r, u + 2, u + 3)]
            o += [mf(vre, M1cre, Ff), mf(vim, M1cim, Ff)]
            return o
        lodd, ljoin = self.L("odd"), self.L("join")
        P(f"s_and_b32 s7, s4, 1\ns_cbranch_scc1 {lodd}")
        for par in range(2):
            P.cond = f"par:{par}"
            blk = []
            for m in range(4):
                for hh in range(2): blk.append(f"ds_read_b64_tr_b16 {vr(TA[m]+2*hh,2)}, v{A[f'aTI{m}']} offset:{512*hh}")
            for m in range(4): blk += [mf(D1re[m], TA[m], M1re), mf(D1im[m], TA[m], M1im)]
            for m in range(4):
                for f in range(2):
                    u = tq[f] + 4 * (m % 2)
                    blk += self.cmul(D1re[m] + 2*par + f, D1im[m] + 2*par + f, TFc + m, TFs + m, u + 2, u + 3, u, u + 1, True) + [cvt(F[f] + m, u + 2, u + 3)]
            Vre = [TA[0], TA[1]]; Vim = [TA[2], TA[3]]
            for f in range(2): blk += tail(F[f], Xre[f], Xim[f], Wr[f], Wi[f], tq[f], Vre[f], Vim[f])
            for r in range(4):
                blk += [cvt(F[0] + r, Vre[0] + r, Vre[1] + r), cvt(F[1] + r, Vim[0] + r, Vim[1] + r),
                        f"ds_write2_b32 v{A['aVO']}, v{F[0]+r}, v{F[1]+r} offset0:{16*r} offset1:{16*r+2}"]
            P.sched(blk, f"B2p{par}")
            if par == 0:
                P(f"s_branch {ljoin}")
                P.cond = None
                P(f"{lodd}:")
        P.cond = None
        P(f"{ljoin}:")
        lsk = self.L("nv")
        P(f"s_cmp_eq_u32 s46, 3\ns_cbranch_scc0 {lsk}")
        P.cond = "nyq"
        self.validate(nloads, self.chk8(NT, tq[0]))
        P.cond = None
        P(f"{lsk}:")
        self.gbar(CNT + 8, 4, VZ, VONE, vt)
        O0, O1 = D1im[0], D1im[1]; cs = D1im[2]
        blk = [f"ds_read_b128 {vr(O0,4)}, v{A['aVOr']}", f"ds_read_b128 {vr(O1,4)}, v{A['aVOr']} offset:4160",
               f"buffer_store_dwordx4 {vr(O0,4)}, v{A['aVst']}, {WS}, s24 offen sc1",
               f"buffer_store_dwordx4 {vr(O1,4)}, v{A['aVst']}, {WS}, s25 offen sc1"]
        blk += self.csum(O0, cs) + [f"buffer_store_dword v{cs}, v{A['aVc']}, {WS}, s24 offen sc1"]
        blk += self.csum(O1, cs + 1) + [f"buffer_store_dword v{cs+1}, v{A['aVc']}, {WS}, s24 offen offset:1024 sc1"]
        P.sched(blk, "B2out")
        self.stamp()
        lsk = self.L("n2")
        P(f"s_cmp_eq_u32 s46, 3\ns_cbranch_scc0 {lsk}")
        P.cond = "nyq"
        blk = [f"""v_lshlrev_b32 v{tq[1]}, 6, v2
        v_add_u32 v{tq[1]}, {NL}, v{tq[1]}
        v_lshl_add_u32 v{tq[1]+1}, v3, 2, v{tq[1]}
        v_lshl_add_u32 v{tq[1]+2}, v3, 4, v{tq[1]}"""]
        for e in range(4): blk.append(f"ds_write_b32 v{tq[1]+1}, v{NT+2*e} offset:{16*e}")
        blk.append(f"ds_read_b128 {vr(TA[0],4)}, v{tq[1]+2}")
        for r in range(8):
            blk += [f"v_lshlrev_b32 v{NW+r}, 16, v{NW+r}", f"v_mul_f32 v{NW+r}, 0.5, v{NW+r}"]
        blk += [mf(TA[1], TA[0], M1re), mf(TA[2], TA[0], M1im)]
        for r in range(4):
            u = tq[0] + 4 * (r % 2)
            blk += self.cmul(TA[1] + r, TA[2] + r, TFc + r, TFs + r, u + 2, u + 3, u, u + 1, True) + [cvt(F[0] + r, u + 2, u + 3)]
        blk += tail(F[0], Xre[0], Xim[0], NW, NW + 4, tq[0], Xre[1], Xim[1])
        blk += [f"""s_lshl_b32 s7, s8, 11
        s_add_u32 s7, s7, {VN_OFF}
        v_lshlrev_b32 v{tq[1]+3}, 9, v3
        v_lshl_add_u32 v{tq[1]+3}, v2, 3, v{tq[1]+3}"""]
        for r in range(4):
            blk += [cvt(NT + 2*r, Xre[1] + r, Xim[1] + r), f"v_add_u32 v{NT+2*r+1}, s5, v{NT+2*r}",
                    f"buffer_store_dwordx2 {vr(NT+2*r,2)}, v{tq[1]+3}, {WS}, s7 offen offset:{128*r} sc1"]
        P.sched(blk, "B2n")
        P.cond = None
        P(f"{lsk}:")
        R.release(m0)
        T3c = R.get(16, 4); T3s = R.get(16, 4); NV = R.get(8, 2); ND = R.get(4, 2)
        m1 = R.mark()
        for k in range(8): P(f"ds_read_b128 {vr(T3c+4*k,4)}, v{A['aTab']} offset:{20480+1024*k}")
        G0, G1 = R.get(4, 4), R.get(4, 4); gc0, gc1, gt0, gt1 = R.get(), R.get(), R.get(), R.get()
        loads = f"""buffer_load_dwordx4 {vr(G0,4)}, v{A['aG']}, {WS}, s26 offen sc1
        buffer_load_dwordx4 {vr(G1,4)}, v{A['aG']}, {WS}, s27 offen sc1
        buffer_load_dword v{gc0}, v{A['aGc']}, {WS}, s28 offen sc1
        buffer_load_dword v{gc1}, v{A['aGc']}, {WS}, s29 offen sc1"""
        P("s_waitcnt vmcnt(0)")
        self.stamp()
        P(loads)
        self.validate(loads, self.chk16(G0, G1, gc0, gc1, gt0, gt1))
        self.stamp()
        vloads = "".join(f"buffer_load_dwordx2 {vr(NV+2*m,2)}, v{A['aVN']}, {WS}, s{(31, 66)[m//2]} offen offset:{2048*(m%2)} sc1\n" for m in range(4))
        P(f"""ds_write_b128 v{A['aHl']}, {vr(G0,4)}
        ds_write_b128 v{A['aHl']}, {vr(G1,4)} offset:4096""")
        P(vloads)
        self.gbar(CNT + 12, 4, VZ, VONE, vt)
        R.release(m1)
        VA = [[R.get(4) for _ in range(2)] for _ in range(4)]
        Dre = [R.get(4) for _ in range(4)]; Dim = [R.get(4) for _ in range(4)]
        tp = R.get(16)
        DR = [VA[0][0], VA[1][0]]; DI = [VA[0][1], VA[1][1]]
        Cc = [VA[2][0], VA[2][1]]; Sc = [VA[3][0], VA[3][1]]
        blk = []
        for tt in range(4):
            for ks in range(2):
                for hh in range(2):
                    blk.append(f"ds_read_b64_tr_b16 {vr(VA[tt][ks]+2*hh,2)}, v{A[f'aVI{tt}']} offset:{4096*ks+512*hh}")
        for tt in range(4):
            blk += [mf(Dre[tt], VA[tt][0], Pre[0]), mf(Dim[tt], VA[tt][0], Pim[0]),
                    mf(Dre[tt], VA[tt][1], Pre[1], Dre[tt]), mf(Dim[tt], VA[tt][1], Pim[1], Dim[tt])]
        for tt in range(4):
            for r in range(4):
                q = tp + 4 * r
                blk += self.cmul(Dre[tt] + r, Dim[tt] + r, T3c + 4*tt + r, T3s + 4*tt + r, q + 2, q + 3, q, q + 1, False)
                if r % 2 == 1:
                    d = 2 * (tt % 2) + r // 2
                    blk += [cvt(DR[tt // 2] + d, q - 2, q + 2), cvt(DI[tt // 2] + d, q - 1, q + 3)]
        for kk in range(2):
            for ct in range(2):
                blk += [mf(Cc[ct], DR[kk], COS[kk][ct], Cc[ct] if kk else None), mf(Sc[ct], DI[kk], SIN[kk][ct], Sc[ct] if kk else None)]
        P.sched(blk, "B3")
        self.validate(vloads, self.chk8(NV, tp))
        Y1, Y2 = Dre[0], Dre[1]
        blk = [f"v_mov_b32 v{ND+m}, v{NV+2*m}" for m in range(4)]
        blk += [mf(Cc[0], NQ, ND, Cc[0]), mf(Cc[1], NQ, ND, Cc[1])]
        for ct in range(2):
            for r in range(4):
                blk += [f"v_sub_f32 v{tp+8*ct+r}, v{Cc[ct]+r}, v{Sc[ct]+r}", f"v_add_f32 v{tp+8*ct+4+r}, v{Cc[ct]+r}, v{Sc[ct]+r}"]
            for d in range(2):
                blk += [cvt(Y1 + 2*ct + d, tp + 8*ct + 2*d, tp + 8*ct + 2*d + 1), cvt(Y2 + 2*ct + d, tp + 8*ct + 4 + 2*d, tp + 8*ct + 5 + 2*d)]
        for Y, a in ((Y1, A['aO1']), (Y2, A['aO2'])):
            blk += [f"v_permlane16_swap_b32 v{Y}, v{Y+2}", f"v_permlane16_swap_b32 v{Y+1}, v{Y+3}",
                    f"buffer_store_dwordx4 {vr(Y,4)}, v{a}, {OUT}, s30 offen {self.opt.get('outsc', '')}"]
        P.sched(blk, "B3out")
        self.stamp()
        self.dump_stamps(tp)
        P("s_endpgm")
        self.vmaxB = R.hi

    def role_A(self):
        P = self.P; R = Regs(10, 256); cvt = self.cvt; mf = self.mf
        VZ, VONE, vt = 5, 6, 7
        self.nst = 1 if self.stamps else 0
        P("L_A:")
        P.reset_state()
        names = list(table_A(0).keys())
        TAr = R.get(4 * NGA, 4)
        A = {nm: TAr + i for i, nm in enumerate(names)}
        vP = R.get(); prm = R.get(7); DK = R.get(4, 4); va = R.get(2)
        m0 = R.mark()
        t = R.get(16, 4)
        P(f"""s_setprio 2
        s_sub_u32 s4, s3, 4
        s_lshr_b32 s44, s4, 1
        s_and_b32 s45, s4, 1
        v_lshrrev_b32 v{t+2}, 3, v1
        v_bfe_u32 v{t+3}, v1, 4, 1
        s_lshl_b32 s12, s45, 2
        v_or_b32 v{t+3}, s12, v{t+3}
        v_and_b32 v{t+4}, 7, v1
        v_xor_b32 v{t+4}, v{t+4}, v{t+3}
        s_lshl_b32 s12, s9, 16
        s_lshl_b32 s13, s4, 14
        s_add_u32 s12, s12, s13
        s_lshl_b32 s13, s8, 7
        s_add_u32 s12, s12, s13
        v_lshlrev_b32 v{t+2}, 10, v{t+2}
        v_add_u32 v{t+2}, s12, v{t+2}
        v_lshl_add_u32 v{t+4}, v{t+4}, 4, v{t+2}
        v_xor_b32 v{t+5}, 32, v{t+4}
        v_add_u32 v{t+5}, 8192, v{t+5}
        s_lshl_b32 s12, s4, 11
        s_add_u32 s12, s12, {UTL}
        s_mov_b32 m0, s12
        s_lshl_b32 s7, s2, 1
        s_add_u32 s7, s7, s44
        s_lshl_b32 s13, s7, 1
        v_mov_b32 v{t+1}, s13
        s_lshl_b32 s7, s7, 8
        s_lshl_b32 s13, s45, 7
        s_add_u32 s7, s7, s13
        v_lshl_add_u32 v{t}, v1, 1, s7""")
        self.tab_addr(va, f"s_mul_i32 s7, s4, {NGA*1024}\ns_add_u32 s7, s7, {TA_OFF + 4096}")
        P(f"""s_waitcnt lgkmcnt(0)
        global_load_lds_dwordx4 v{t+4}, s[16:17]
        s_add_u32 s12, s12, 1024
        s_mov_b32 m0, s12
        s_mov_b64 s[50:51], 8192
        global_load_lds_dwordx4 v{t+5}, s[16:17]
        global_load_dwordx4 {vr(TAr,4)}, {vr(va,2)}, off offset:-4096""")
        for k in range(6): P(f"global_load_ushort v{prm+k}, v{t}, s[{18+2*k}:{19+2*k}]")
        P(f"global_load_ushort v{prm+6}, v{t+1}, s[30:31]")
        for k in range(1, 8): P(f"global_load_dwordx4 {vr(TAr+4*k,4)}, {vr(va,2)}, off offset:{1024*k-4096}")
        P(f"v_lshl_add_u64 {vr(va,2)}, {vr(va,2)}, 0, s[50:51]")
        for k in range(8, NGA): P(f"global_load_dwordx4 {vr(TAr+4*k,4)}, {vr(va,2)}, off offset:{1024*(k-8)-4096}")
        self.epoch()
        self.stamp()
        z = t + 8
        P(f"""v_mov_b32 v{z}, 0
        v_mov_b32 v{z+1}, 0
        v_mov_b32 v{z+2}, 0
        v_mov_b32 v{z+3}, 0
        s_lshl_b32 s7, s44, 4
        s_add_u32 s7, s7, {CNT + 32}
        v_mov_b32 v{vP}, s7
        s_mul_i32 s7, s44, 4576
        s_add_u32 s7, s7, {UU}
        v_add_u32 v{t+6}, s7, v8
        ds_write_b128 v{t+6}, {vr(z,4)}
        s_mul_i32 s7, s44, 1600
        s_add_u32 s7, s7, {KC}
        v_mov_b32 v{t+7}, s7
        ds_write_b128 v{t+7}, {vr(z,4)}
        s_lshl_b32 s7, s8, 5
        s_add_u32 s7, s7, s9
        s_mul_i32 s16, s7, {US}
        s_add_u32 s16, s16, {UT_OFF}
        s_lshr_b32 s12, s2, 5
        s_mul_i32 s12, s12, {32*US}
        s_add_u32 s12, s12, {UT_OFF}
        s_lshl_b32 s13, s2, 1
        s_and_b32 s13, s13, 63
        s_lshl_b32 s17, s13, 7
        s_add_u32 s17, s17, s12
        s_lshl_b32 s18, s13, 5
        s_add_u32 s18, s18, s12
        s_mul_i32 s19, s2, {YS}
        s_add_u32 s19, s19, {YT_OFF}
        s_mul_i32 s12, s8, {32*YS}
        s_add_u32 s12, s12, {YT_OFF}
        s_lshl_b32 s20, s9, 7
        s_add_u32 s20, s20, s12
        s_add_u32 s21, s20, 4096
        s_lshl_b32 s22, s9, 5
        s_add_u32 s22, s22, s12
        s_lshl_b32 s23, s9, 17
        s_lshl_b32 s12, s8, 7
        s_add_u32 s23, s23, s12
        s_add_u32 s24, s23, 16384
        s_add_u32 s32, s32, s12
        s_addc_u32 s33, s33, 0
        s_waitcnt vmcnt({NGA + 7})""")
        self.tag(vt)
        self.stamp()
        R.release(m0)
        TU = [R.get(4, 4), R.get(4, 4)]; cs = R.get(2)
        blk = []
        for s in range(2):
            for hh in range(2): blk.append(f"ds_read_b64_tr_b16 {vr(TU[s]+2*hh,2)}, v{A[f'aTR{s}']} offset:{UTL+512*hh}")
        for s in range(2): blk.append(f"buffer_store_dwordx4 {vr(TU[s],4)}, v{A['aUst']}, {WS}, s16 offen offset:{1024*s} sc1")
        for s in range(2): blk += self.csum(TU[s], cs + s) + [f"buffer_store_dword v{cs+s}, v{A['aUc']}, {WS}, s16 offen offset:{256*s} sc1"]
        P.sched(blk, "A0")
        P("s_setprio 0")
        self.stamp()
        t = R.get(16); w1 = R.get(2); w8 = R.get(2); w256 = R.get(2)
        H = [R.get(2) for _ in range(21)]; E = [R.get(2) for _ in range(4)]; pt = [R.get(2) for _ in range(4)]; cw = R.get(8)
        L2E = math.log2(math.e); Lhi = struct.unpack("<f", struct.pack("<f", L2E))[0]; Llo = L2E - Lhi
        are, aim, bre, bim, cre, cim, ld = [prm + k for k in range(7)]
        blk = [f"v_lshlrev_b32 v{prm+k}, 16, v{prm+k}" for k in range(7)]
        blk += [f"""s_mov_b32 s46, {fl(Lhi)}
        s_mov_b32 s47, {fl(Llo)}
        v_mul_f32 v{t}, s46, v{ld}
        v_fma_f32 v{t+1}, v{ld}, s46, -v{t}
        v_fma_f32 v{t+1}, v{ld}, s47, v{t+1}
        v_exp_f32 v{t+2}, v{t}
        v_mul_f32 v{t+1}, {fl(math.log(2))}, v{t+1}
        v_fma_f32 v{t+2}, v{t+2}, v{t+1}, v{t+2}
        v_cvt_pk_bf16_f32 v{t+2}, v{t+2}, v{t+2}
        v_and_b32 v{t+2}, 0xffff0000, v{t+2}
        v_mul_f32 v{are}, v{t+2}, v{are}
        v_mul_f32 v{aim}, v{t+2}, v{aim}
        v_mul_f32 v{bre}, v{t+2}, v{bre}
        v_mul_f32 v{bim}, v{t+2}, v{bim}
        v_mul_f32 v{are}, {fl(Lhi)}, v{are}
        v_mul_f32 v{aim}, {fl(1/(2*math.pi))}, v{aim}
        v_mul_f32 v{t+3}, v{cim}, v{bim}
        v_mul_f32 v{t+4}, v{cim}, v{bre}
        v_fma_f32 v{H[0]}, v{cre}, v{bre}, -v{t+3}
        v_fma_f32 v{H[0]+1}, v{cre}, v{bim}, v{t+4}"""]
        for i, (Mv, wd) in enumerate(((8.0, w8), (1.0, w1), (256.0, w256))):
            u = t + 5 + 3 * i
            blk += [f"v_mul_f32 v{u}, {fl(Mv)}, v{are}", f"v_mul_f32 v{u+1}, {fl(Mv)}, v{aim}", f"v_exp_f32 v{u}, v{u}",
                    f"v_fract_f32 v{u+1}, v{u+1}", f"v_cos_f32 v{u+2}, v{u+1}", f"v_sin_f32 v{u+1}, v{u+1}",
                    f"v_mul_f32 v{wd}, v{u}, v{u+2}", f"v_mul_f32 v{wd+1}, v{u}, v{u+1}"]
        P.sched(blk, "Kset")
        P(f"global_load_dwordx4 {vr(DK,4)}, v{A['aDK']}, s[32:33]")
        cnt = [0]
        def pkm(zr, x, w):
            p = pt[cnt[0] % 4]; cnt[0] += 1
            return [f"v_pk_mul_f32 {vr(p,2)}, {vr(x,2)}, {vr(w,2)} op_sel:[0,0] op_sel_hi:[1,0]",
                    f"v_pk_fma_f32 {vr(zr,2)}, {vr(x,2)}, {vr(w,2)}, {vr(p,2)} op_sel:[1,1,0] op_sel_hi:[0,1,1] neg_lo:[1,0,0]"]
        wc = [0]
        def put(row, zr, neg):
            d = cw + wc[0] % 8; wc[0] += 1
            return [cvt(d, zr, zr + 1, False, neg), f"ds_write_b32 v{A['aFW']}, v{d} offset:{272*row}"]
        hsteps = [(i, i - 1, w1) for i in range(1, 8)] + [(8, 0, w256), (9, 2, w256), (10, 4, w256), (11, 6, w256), (12, 8, w256), (13, 10, w256),
                  (14, 12, w256), (15, 13, w256), (16, 14, w256), (17, 16, w256), (18, 17, w256), (19, 18, w256), (20, 19, w256)]
        blk = [f"v_mov_b32 v{cw+7}, 0x3f80", f"ds_write_b32 v{A['aFW']}, v{cw+7} offset:{272*21}"] + put(22, w8, False) + put(0, H[0], True)
        prev = w8
        for m in range(2, 32):
            cur = E[m % 4]
            blk += pkm(cur, prev, w8) + put(21 + m, cur, False); prev = cur
            if m - 2 < len(hsteps):
                d, sdx, w = hsteps[m - 2]
                blk += pkm(H[d], H[sdx], w) + put(d, H[d], True)
        P.sched(blk, "Kfac")
        self.gbar(0, 2, vP, VONE, vt)
        self.stamp()
        R.release(m0)
        UG = [R.get(4, 4), R.get(4, 4)]; uc0, uc1, ut0, ut1 = [R.get() for _ in range(4)]
        uloads = f"""buffer_load_dwordx4 {vr(UG[0],4)}, v{A['aUG']}, {WS}, s17 offen sc1
        buffer_load_dwordx4 {vr(UG[1],4)}, v{A['aUG']}, {WS}, s17 offen offset:128 sc1
        buffer_load_dword v{uc0}, v{A['aUGc']}, {WS}, s18 offen sc1
        buffer_load_dword v{uc1}, v{A['aUGc']}, {WS}, s18 offen offset:32 sc1"""
        P(uloads)
        m1 = R.mark()
        FA = [[R.get(4) for _ in range(8)] for _ in range(2)]; FB = [R.get(4) for _ in range(8)]
        KD = [R.get(4), R.get(4)]; kd = R.get(4)
        blk = []
        for k in range(8):
            off = (k // 4) * FACW + (k % 4) * 64
            blk += [f"ds_read_b128 {vr(FB[k],4)}, v{A['aFB']} offset:{off}", f"ds_read_b128 {vr(FA[0][k],4)}, v{A['aFA0']} offset:{off}",
                    f"ds_read_b128 {vr(FA[1][k],4)}, v{A['aFA1']} offset:{off}"]
        mm = [mf(KD[rt], FA[rt][k], FB[k], KD[rt] if k else None) for k in range(8) for rt in range(2)]
        seq = blk[:12]
        for k in range(16):
            seq.append(mm[k])
            if 12 + k < 24: seq.append(blk[12 + k])
        P("\n".join(seq))
        P("\n".join([cvt(kd, KD[0], KD[0] + 1), cvt(kd + 1, KD[0] + 2, KD[0] + 3), cvt(kd + 2, KD[1], KD[1] + 1),
                f"ds_write_b32 v{A['aK0']}, v{kd}", f"ds_write_b32 v{A['aK1']}, v{kd+1}",
                f"ds_write_b16 v{A['aK2']}, v{kd+2}", f"ds_write_b16_d16_hi v{A['aK2']}, v{kd+2} offset:256"]))
        self.gbar(4, 2, vP, VONE, vt)
        R.release(m1)
        e = R.get(19); CP = [R.get(8, 4) for _ in range(4)]; z = R.get(4, 4)
        blk = ["s_mov_b32 s47, 0x05040100"] + [f"v_mov_b32 v{z+k}, 0" for k in range(4)]
        blk += [f"ds_read_u16 v{e+y}, v{A[f'aE{y}']}" for y in range(19)]
        blk += [f"ds_write_b128 v{A['aKZ']}, {vr(z,4)}"]
        for s in range(4):
            for k in range(8): blk.append(f"v_perm_b32 v{CP[s]+k}, v{e+s+2*k+1}, v{e+s+2*k}, s47")
            blk += [f"ds_write_b128 v{A['aKRw']}, {vr(CP[s],4)} offset:{4160*s}", f"ds_write_b128 v{A['aKRw']}, {vr(CP[s]+4,4)} offset:{4160*s+16}"]
        P.sched(blk, "Kexp")
        self.stamp()
        self.validate(uloads, self.chk16(UG[0], UG[1], uc0, uc1, ut0, ut1))
        self.stamp()
        P(f"""ds_write_b128 v{A['aUU']}, {vr(UG[0],4)}
        ds_write_b128 v{A['aUU']}, {vr(UG[1],4)} offset:4576""")
        self.gbar(CNT + 16, 4, VZ, VONE, vt)
        R.release(m0)
        ACC = [R.get(4) for _ in range(8)]
        KA = [[R.get(4) for _ in range(8)] for _ in range(2)]; UB = [[R.get(4) for _ in range(8)] for _ in range(2)]
        def reads(rl):
            b = rl % 2; o = []
            for k in range(8):
                offK = 64 * (59 - 8 * k - rl); offU = 64 * (8 * k - rl + 3)
                o += [f"ds_read_b64 {vr(KA[b][k],2)}, v{A['aKA']} offset:{offK}", f"ds_read_b64 {vr(KA[b][k]+2,2)}, v{A['aKA']} offset:{offK+8}",
                      f"ds_read_b128 {vr(UB[b][k],4)}, v{A['aUB']} offset:{offU}"]
            return o
        order = [(ch, e_) for k in range(8) for ch in range(k + 1) for e_ in range(k + 1) if max(ch, e_) == k and ch + e_ <= 7]
        started = set(); seq = []
        pend = reads(0); seq += pend[:9]; pend = pend[9:]
        for rl in range(4):
            b = rl % 2
            if rl < 3: pend = pend + reads(rl + 1)
            for i, (ch, e_) in enumerate(order):
                nb = ch + e_
                seq.append(mf(ACC[nb], KA[b][ch], UB[b][e_], ACC[nb] if nb in started else None)); started.add(nb)
                take = 2 if (rl == 0 and i < 8) else 1
                if rl == 0 or i >= 4:
                    seq += pend[:take]; pend = pend[take:]
        assert not pend
        P("\n".join(seq))
        self.stamp()
        RD = [KA[0][k] for k in range(4)]; YO = [KA[0][4], KA[0][5]]; cs = KA[0][6]
        lodd, ljoin = self.L("rodd"), self.L("rjoin")
        P(f"s_cmp_eq_u32 s45, 1\ns_cbranch_scc1 {lodd}")
        for h in range(2):
            P.cond = f"hw:{h}"
            for k in range(4): P(f"ds_write_b128 v{A['aRw']}, {vr(ACC[4*(1-h)+k],4)} offset:{1024*k}")
            if h == 0:
                P(f"s_branch {ljoin}"); P.cond = None; P(f"{lodd}:")
        P.cond = None
        P(f"{ljoin}:")
        self.gbar(8, 2, vP, VONE, vt)
        for k in range(4): P(f"ds_read_b128 {vr(RD[k],4)}, v{A['aRr']} offset:{1024*k}")
        lodd, ljoin = self.L("sodd"), self.L("sjoin")
        P(f"s_cmp_eq_u32 s45, 1\ns_cbranch_scc1 {lodd}")
        for h in range(2):
            P.cond = f"hs:{h}"
            for k in range(4):
                for r in range(4): P(f"v_add_f32 v{RD[k]+r}, v{RD[k]+r}, v{ACC[4*h+k]+r}")
            if h == 0:
                P(f"s_branch {ljoin}"); P.cond = None; P(f"{lodd}:")
        P.cond = None
        P(f"{ljoin}:")
        blk = []
        for kp in range(2):
            for k in range(2):
                blk += [cvt(YO[kp] + 2*k, RD[2*kp + k], RD[2*kp + k] + 1), cvt(YO[kp] + 2*k + 1, RD[2*kp + k] + 2, RD[2*kp + k] + 3)]
            blk += [f"v_permlane16_swap_b32 v{YO[kp]}, v{YO[kp]+2}", f"v_permlane16_swap_b32 v{YO[kp]+1}, v{YO[kp]+3}",
                    f"buffer_store_dwordx4 {vr(YO[kp],4)}, v{A['aYst']}, {WS}, s19 offen offset:{1024*kp} sc1"]
        for kp in range(2): blk += self.csum(YO[kp], cs + kp) + [f"buffer_store_dword v{cs+kp}, v{A['aYc']}, {WS}, s19 offen offset:{256*kp} sc1"]
        P.sched(blk, "Yout")
        self.stamp()
        R.release(m0)
        TS_ = R.get(16); UR = [R.get(4, 4), R.get(4, 4)]; Df = R.get(8); t = R.get(16)
        blk = [f"ds_read_b128 {vr(UR[0],4)}, v{A['aUR0']}", f"ds_read_b128 {vr(UR[1],4)}, v{A['aUR1']}"]
        for d in range(4): blk += [f"v_lshlrev_b32 v{Df+2*d}, 16, v{DK+d}", f"v_and_b32 v{Df+2*d+1}, 0xffff0000, v{DK+d}"]
        for it in range(2):
            for d in range(4):
                a, b = t + 8*it + 2*d, t + 8*it + 2*d + 1
                blk += [f"v_lshlrev_b32 v{a}, 16, v{UR[it]+d}", f"v_and_b32 v{b}, 0xffff0000, v{UR[it]+d}",
                        f"v_mul_f32 v{a}, v{a}, v{Df+2*d}", f"v_mul_f32 v{b}, v{b}, v{Df+2*d+1}", cvt(UR[it] + d, a, b),
                        f"v_lshlrev_b32 v{TS_+8*it+2*d}, 16, v{UR[it]+d}", f"v_and_b32 v{TS_+8*it+2*d+1}, 0xffff0000, v{UR[it]+d}"]
        P.sched(blk, "skip")
        YG = [R.get(4, 4), R.get(4, 4)]; yc0, yc1, yt0, yt1 = [R.get() for _ in range(4)]
        yloads = f"""buffer_load_dwordx4 {vr(YG[0],4)}, v{A['aUG']}, {WS}, s20 offen sc1
        buffer_load_dwordx4 {vr(YG[1],4)}, v{A['aUG']}, {WS}, s21 offen sc1
        buffer_load_dword v{yc0}, v{A['aUGc']}, {WS}, s22 offen sc1
        buffer_load_dword v{yc1}, v{A['aUGc']}, {WS}, s22 offen offset:1024 sc1"""
        P("s_waitcnt vmcnt(0)")
        self.stamp()
        P(yloads)
        self.validate(yloads, self.chk16(YG[0], YG[1], yc0, yc1, yt0, yt1))
        self.stamp()
        P(f"""ds_write_b128 v{A['aYw']}, {vr(YG[0],4)}
        ds_write_b128 v{A['aYw']}, {vr(YG[1],4)} offset:128""")
        self.gbar(CNT + 20, 4, VZ, VONE, vt)
        blk = []
        for it in range(2):
            for hh in range(2): blk.append(f"ds_read_b64_tr_b16 {vr(UR[it]+2*hh,2)}, v{A[f'aTR{it}']} offset:{YTL+512*hh}")
        for it in range(2):
            for d in range(4):
                a, b = t + 8*it + 2*d, t + 8*it + 2*d + 1
                blk += [f"v_lshlrev_b32 v{a}, 16, v{UR[it]+d}", f"v_and_b32 v{b}, 0xffff0000, v{UR[it]+d}",
                        f"v_add_f32 v{a}, v{a}, v{TS_+8*it+2*d}", f"v_add_f32 v{b}, v{b}, v{TS_+8*it+2*d+1}", cvt(YG[it] + d, a, b)]
            blk.append(f"buffer_store_dwordx4 {vr(YG[it],4)}, v{A['aOA']}, {OUT}, s{23+it} offen {self.opt.get('outsc', '')}")
        P.sched(blk, "A3")
        self.stamp()
        self.dump_stamps(t)
        P("L_end:\ns_endpgm")
        self.vmaxA = R.hi

    def build(self):
        self.prologue(); self.role_B(); self.role_A()
        body = self.P.text()
        nv = max(self.vmaxA, self.vmaxB)
        ref = open("cdna_kernels/" + NAME + ".s.ref").read().split("\n")
        head = [l for l in ref if l.startswith(";") and "@launch" not in l and "Override" not in l and "grid=ceil" not in l]
        s = "\n".join(head) + f"\n; @launch grid=(256,1,1) block=(512,1,1) lds={LDS_BYTES}\n"
        tb = table_bytes().view(np.uint64)
        tab = "".join(".quad " + ",".join("0x%x" % x for x in tb[i:i + 8]) + "\n" for i in range(0, len(tb), 8))
        s += f""".amdgcn_target "amdgcn-amd-amdhsa--gfx950"
.text
.globl {NAME}_kernel
.p2align 8
.type {NAME}_kernel,@function
{NAME}_kernel:
{body}; per-lane constant tables: addresses, DFT matrix fragments (bf16 pairs), twiddles (f32)
.p2align 8
.type TABLE,@object
TABLE:
{tab}.size TABLE, {len(tb) * 8}
.section .rodata,"a"
.p2align 6
.amdhsa_kernel {NAME}_kernel
  .amdhsa_next_free_vgpr {nv}
  .amdhsa_next_free_sgpr 102
  .amdhsa_accum_offset {(nv + 3) // 4 * 4}
  .amdhsa_group_segment_fixed_size 0
  .amdhsa_kernarg_size 120
  .amdhsa_user_sgpr_count 2
  .amdhsa_user_sgpr_kernarg_segment_ptr 1
  .amdhsa_system_sgpr_workgroup_id_x 1
.end_amdhsa_kernel
"""
        return s

if __name__ == "__main__":
    out = [a for a in sys.argv[1:] if not a.startswith("--")]
    opt = dict(a[2:].split("=", 1) for a in sys.argv[1:] if a.startswith("--") and "=" in a)
    g = Gen("--stamps" in sys.argv, "--nonce" in sys.argv, opt); s = g.build()
    open(out[0] if out else "cdna_kernels/" + NAME + ".s", "w").write(s)
    print("vgpr B/A", g.vmaxB, g.vmaxA, "lds", LDS_BYTES, "bytes", len(s), "NGB", NGB, "NGA", NGA)
    for n, k, t in g.P.est: print(f"  {n}: {k} instrs, est {t} cyc")
```
